```python
import torch

def _softmax(x, axis=-1):
    return torch.softmax(x, dim=axis)

def _gelu(x):
    return torch.nn.functional.gelu(x, approximate='tanh')

def _silu(x):
    return torch.nn.functional.silu(x)

def _sigmoid(x):
    return torch.sigmoid(x)

def _layernorm(x, axis=-1, eps=1e-05):
    m = x.mean(dim=axis, keepdim=True)
    v = x.var(dim=axis, keepdim=True, unbiased=False)
    return (x - m) / torch.sqrt(v + eps)

def _scatter_add(tgt, idx, src, axis=0):
    return tgt.clone().index_add_(axis, idx, src)

def _segment_sum(src, seg, n):
    out = torch.zeros((n,) + src.shape[1:], dtype=src.dtype)
    return out.index_add_(0, seg, src)

def _pad(x, pw):
    flat = tuple((v for pair in reversed(pw) for v in pair))
    return torch.nn.functional.pad(x, flat)
kernel_name = 'adaLN_cond__sliding_block_cached__geglu_ffn__decode'

def setup_inputs():

    _w = lambda a: (lambda t: t.to(torch.bfloat16) if t.is_floating_point() else t)(torch.as_tensor(a))

    def _A_setup():
        B, Sq, D = (1, 1, 576)
        Hq, Hkv, Sk, Dh = (32, 16, 65536, 128)
        assert Hq % Hkv == 0, (Hq, Hkv)
        return {'x': _w((lambda *s: torch.randn(*s, dtype=torch.bfloat16) * 0.05)(B, Sq, D)), 'k_cache': _w((lambda *s: torch.randn(*s, dtype=torch.bfloat16) * 3.2)(B, Hkv, Sk, Dh)), 'v_cache': _w((lambda *s: torch.randn(*s, dtype=torch.bfloat16) * 0.4)(B, Hkv, Sk, Dh)), 'wq': _w((lambda *s: torch.randn(*s, dtype=torch.bfloat16) * 3.2)(D, Hq * Dh) * D ** (-0.5)), 'wo': _w((lambda *s: torch.randn(*s, dtype=torch.bfloat16) * 0.4)(Hq * Dh, D) * (Hq * Dh) ** (-0.5))}
    _A_in = _A_setup()

    def _B_setup():
        B, S, D, F = (1, 1, 576, 4608)
        return {'x': _w((lambda *s: torch.randn(*s, dtype=torch.bfloat16) * 0.05)(B, S, D)), 'w_gate': _w((lambda *s: torch.randn(*s, dtype=torch.bfloat16) * 0.05)(D, F)), 'w_up': _w((lambda *s: torch.randn(*s, dtype=torch.bfloat16) * 0.05)(D, F)), 'w_down': _w((lambda *s: torch.randn(*s, dtype=torch.bfloat16) * 0.05)(F, D))}
    _B_in = _B_setup()
    return {'A_x': _A_in['x'], 'A_k_cache': _A_in['k_cache'], 'A_v_cache': _A_in['v_cache'], 'A_wq': _A_in['wq'], 'A_wo': _A_in['wo'], 'B_x': _B_in['x'], 'B_w_gate': _B_in['w_gate'], 'B_w_up': _B_in['w_up'], 'B_w_down': _B_in['w_down'], 'c': _w((lambda *s: torch.randn(*s, dtype=torch.bfloat16) * 0.1)(1, 576) * 8.0), 'w_mod': _w((lambda *s: torch.randn(*s, dtype=torch.bfloat16) * 0.1)(576, 6 * 576) * 576 ** (-0.5) * 8.0)}

def reference(A_x, A_k_cache, A_v_cache, A_wq, A_wo, B_x, B_w_gate, B_w_up, B_w_down, c, w_mod):

    def _A_ref(x, k_cache, v_cache, wq, wo):
        B, Sq, D = x.shape
        Hq, Dh = (32, 128)
        Hkv, Sk = (k_cache.shape[1], k_cache.shape[2])
        W = min(4096, max(256, Sk // 4))
        rep = Hq // Hkv
        q = (lambda x, *d: x.permute(*d))((x @ wq).reshape(B, Sq, Hq, Dh), 0, 2, 1, 3)
        k = (lambda x, n, axis: torch.repeat_interleave(x, n, dim=axis))(k_cache[:, :, Sk - W:, :], rep, axis=1)
        v = (lambda x, n, axis: torch.repeat_interleave(x, n, dim=axis))(v_cache[:, :, Sk - W:, :], rep, axis=1)
        scores = torch.einsum('bhqd,bhkd->bhqk', q, k) * Dh ** (-0.5)
        p = _softmax(scores, axis=-1)
        o = torch.einsum('bhqk,bhkd->bhqd', p, v)
        return (lambda x, *d: x.permute(*d))(o, 0, 2, 1, 3).reshape(B, Sq, Hq * Dh) @ wo

    def _B_ref(x, w_gate, w_up, w_down):
        return _gelu(x @ w_gate) * (x @ w_up) @ w_down
    x = A_x
    mod = (_silu(c) @ w_mod).reshape(c.shape[0], 6, 1, -1)
    sa, ca, ga, sb, cb, gb = (mod[:, 0].clone(), mod[:, 1].clone(), mod[:, 2].clone(), mod[:, 3].clone(), mod[:, 4].clone(), mod[:, 5].clone())
    h = _layernorm(x, axis=-1) * (1 + ca) + sa
    x = x + ga * _A_ref(h, A_k_cache, A_v_cache, A_wq, A_wo)
    h = _layernorm(x, axis=-1) * (1 + cb) + sb
    x = x + gb * _B_ref(h, B_w_gate, B_w_up, B_w_down)
    return x
```

```python
import re

REG_RE = re.compile(r'^(-?)(abs\()?([vsa])(?:(\d+)|\[(\d+):(\d+)\])\)?$')

def parse_regs(tok):
    tok = tok.strip()
    if tok in ("vcc",): return {("s", "vcc_lo"), ("s", "vcc_hi")}
    if tok in ("vcc_lo", "vcc_hi"): return {("s", tok)}
    if tok == "exec": return {("s", "exec_lo"), ("s", "exec_hi")}
    if tok in ("exec_lo", "exec_hi"): return {("s", tok)}
    if tok == "m0": return {("s", "m0")}
    m = REG_RE.match(tok)
    if not m: return set()
    k = m.group(3)
    if m.group(4) is not None: return {(k, int(m.group(4)))}
    return {(k, i) for i in range(int(m.group(5)), int(m.group(6)) + 1)}

TRANS = ("v_exp_f32", "v_log_f32", "v_rcp_f32", "v_rsq_f32", "v_sqrt_f32", "v_sin_f32", "v_cos_f32", "v_rcp_iflag_f32")

def split_ops(rest):
    ops = []; depth = 0; cur = ""
    for ch in rest:
        if ch in "[(": depth += 1
        if ch in "])": depth -= 1
        if ch == "," and depth == 0: ops.append(cur.strip()); cur = ""
        else: cur += ch
    if cur.strip(): ops.append(cur.strip())
    mods = ""
    if ops:
        last = ops[-1].split(None, 1)
        ops[-1] = last[0]
        if len(last) > 1: mods = last[1]
    return ops, mods

class Ins:
    __slots__ = ("text", "op", "ops", "mods", "kind", "wr", "rd", "dpp", "label", "target", "mf")
    def __init__(self, text):
        self.text = text
        self.label = None; self.target = None; self.kind = "other"; self.wr = set(); self.rd = set(); self.dpp = False; self.mf = None
        t = text.split(";")[0].strip()
        if not t: self.kind = "empty"; self.op = ""; return
        if t.endswith(":"): self.kind = "label"; self.label = t[:-1]; self.op = ""; return
        if t.startswith("."): self.kind = "directive"; self.op = ""; return
        sp = t.split(None, 1)
        self.op = op = sp[0]
        rest = sp[1] if len(sp) > 1 else ""
        ops, mods = split_ops(rest)
        self.ops = ops; self.mods = mods
        R = [parse_regs(o) for o in ops]
        def U(lst):
            s = set()
            for x in lst: s |= x
            return s
        if op.startswith("v_mfma"):
            self.kind = "mfma"; self.wr = R[0]; self.rd = U(R[1:]); self.mf = (R[0], R[1], R[2], R[3])
        elif op.startswith("v_cmp"):
            self.kind = "valu"; self.wr = R[0]; self.rd = U(R[1:])
        elif op.startswith("v_readlane") or op.startswith("v_readfirstlane"):
            self.kind = "valu"; self.wr = R[0]; self.rd = U(R[1:])
        elif op.startswith("v_writelane"):
            self.kind = "valu"; self.wr = R[0]; self.rd = U(R)
        elif op.startswith("v_permlane") and "swap" in op:
            self.kind = "valu"; self.wr = U(R); self.rd = U(R)
        elif op.startswith("v_"):
            self.kind = "valu"; self.wr = set(R[0]); self.rd = U(R[1:])
            if op.startswith(("v_add_co", "v_sub_co", "v_addc_co", "v_subb_co", "v_subrev_co", "v_div_scale", "v_mad_u64_u32")):
                self.wr |= R[1]; self.rd = U(R[2:])
            if op.startswith(("v_fmac", "v_dot2c", "v_mac", "v_pk_fmac")): self.rd |= R[0]
            if op.startswith("v_cndmask") and len(ops) == 3: self.rd |= parse_regs("vcc")
            if "dpp" in op or "row_" in mods or "quad_perm" in mods or "row_" in rest:
                self.dpp = True; self.rd |= R[0]
        elif op.startswith("ds_read") or op.startswith("ds_bpermute") or op.startswith("ds_permute") or op.startswith("ds_swizzle"):
            self.kind = "ds"; self.wr = R[0]; self.rd = U(R[1:])
        elif op.startswith("ds_"):
            self.kind = "ds"; self.rd = U(R)
            if "rtn" in op: self.wr = R[0]; self.rd = U(R[1:])
        elif op.startswith("buffer_load") or op.startswith("global_load"):
            self.kind = "vmem"
            if "lds" in op or " lds" in (" " + mods): self.rd = U(R)
            else: self.wr = R[0]; self.rd = U(R[1:])
        elif op.startswith("buffer_store"):
            self.kind = "vstore"; self.rd = U(R); self.mf = R[0]
        elif op.startswith("global_store"):
            self.kind = "vstore"; self.rd = U(R); self.mf = R[1]
        elif op.startswith("buffer_atomic") or op.startswith("global_atomic"):
            self.kind = "vmem"; self.rd = U(R)
            if "sc0" in mods: self.wr = R[0]
        elif op.startswith("s_"):
            self.kind = "salu"
            if op in ("s_branch",) or op.startswith("s_cbranch"):
                self.target = ops[0]
                if "vcc" in op: self.rd = parse_regs("vcc")
                if "exec" in op: self.rd = parse_regs("exec")
            elif op.startswith(("s_cmp", "s_bitcmp", "s_waitcnt", "s_nop", "s_barrier", "s_endpgm", "s_sleep", "s_setprio")):
                self.rd = U(R)
            elif op.startswith(("s_load", "s_memrealtime", "s_memtime", "s_atomic")):
                self.kind = "smem"; self.wr = R[0]; self.rd = U(R[1:])
            else:
                self.wr = R[0] if R else set(); self.rd = U(R[1:])
                if "saveexec" in op: self.wr = self.wr | parse_regs("exec"); self.rd |= parse_regs("exec")
        else:
            raise ValueError("unknown instr: " + text)
    def states(self):
        if self.kind in ("empty", "label", "directive"): return 0
        if self.op == "s_nop": return int(self.ops[0], 0) + 1
        return 1

def isv(s): return {r for r in s if r[0] in "va"}
def iss(s): return {r for r in s if r[0] == "s"}

def required(prod, cons):
    need = 0
    pk, ck = prod.kind, cons.kind
    if pk == "valu":
        wv = isv(prod.wr); ws = iss(prod.wr)
        if wv:
            if ck == "mfma" and wv & cons.rd: need = max(need, 2)
            if ck == "valu":
                if cons.dpp and wv & cons.rd: need = max(need, 2)
                if cons.op.startswith("v_permlane") and wv & cons.rd: need = max(need, 2)
                if cons.op.startswith(("v_readlane", "v_readfirstlane")) and wv & cons.rd: need = max(need, 1)
                if prod.op in TRANS and cons.op not in TRANS and wv & cons.rd: need = max(need, 1)
            if ck == "mfma" and prod.op in TRANS and wv & cons.rd: need = max(need, 2)
        if ws:
            if ck in ("valu", "mfma") and ws & cons.rd:
                need = max(need, 2)
                if cons.op.startswith(("v_readlane", "v_writelane")): need = max(need, 4)
            if ck in ("vmem", "vstore") and ws & cons.rd: need = max(need, 5)
            if ck in ("salu", "smem") and ws & cons.rd: need = max(need, 1)
            if ck == "ds" and ws & cons.rd: need = max(need, 5)
    elif pk == "mfma":
        D = prod.mf[0]; C = prod.mf[3]
        if ck == "mfma":
            if D & (cons.mf[1] | cons.mf[2]): need = max(need, 8)
            if D & cons.mf[3]:
                if cons.mf[3] != D: need = max(need, 6)
            elif D & cons.mf[0]: need = max(need, 8)
        elif ck == "valu":
            if D & (cons.rd | cons.wr): need = max(need, 8)
            if C & cons.wr: need = max(need, 3)
        elif ck in ("vmem", "vstore", "ds"):
            if D & (cons.rd | cons.wr): need = max(need, 8)
            if C & cons.wr: need = max(need, 3)
    elif pk == "vstore":
        if prod.op.endswith(("x3", "x4")):
            if ck == "valu" and prod.mf & cons.wr: need = max(need, 2)
            if ck in ("vmem", "ds") and prod.mf & cons.wr: need = max(need, 1)
    elif pk == "salu":
        if ("s", "m0") in prod.wr and (ck == "vmem" and ("lds" in cons.op or "lds" in getattr(cons, "mods", ""))): need = max(need, 1)
        if ("s", "m0") in prod.wr and ck == "valu" and ("s", "m0") in cons.rd: need = max(need, 1)
    return need

MAXW = 8
def hazard_pass(lines):
    ins = [Ins(l) for l in lines]
    out = []
    win = []
    snaps = {}
    nnop = 0
    for it in ins:
        if it.kind == "label":
            if it.label in snaps:
                for sn in snaps.pop(it.label): win = win + sn
            out.append(it.text); continue
        if it.kind in ("empty", "directive"):
            out.append(it.text); continue
        need = 0
        for p, age in win:
            r = required(p, it)
            if r > age: need = max(need, r - age)
        if need > 0 and it.op != "s_nop":
            out.append(f"  s_nop {need-1}"); nnop += 1
            win = [(p, a + need) for p, a in win]
        out.append(it.text)
        st = it.states()
        win = [(p, a + st) for p, a in win if a + st < MAXW + 1]
        if it.kind in ("valu", "mfma", "vstore", "salu"): win.append((it, 0))
        if it.target is not None:
            snaps.setdefault(it.target, []).append(list(win))
            if it.op == "s_branch": win = []
        if it.op == "s_endpgm": win = []
    return out, nnop

class Asm:
    def __init__(self):
        self.L = []
        self.uid = 0
    def __call__(self, s):
        for line in s.strip("\n").split("\n"):
            t = line.strip()
            if not t: continue
            self.L.append(t if t.endswith(":") else "  " + t)
    def label(self, n): self.L.append(n + ":")
    def newlabel(self, p="L"):
        self.uid += 1
        return f"{p}_{self.uid}"
    def comment(self, c): self.L.append("  ; " + c)
    def text(self):
        o, n = hazard_pass(self.L)
        return "\n".join(o) + "\n", n
```

```python
import sys, struct
sys.path.insert(0, "work")
from asmlib import Asm
KN = "adaLN_cond__sliding_block_cached__geglu_ffn__decode"
HDR = open("cdna_kernels/%s.s.ref" % KN).read().split("; Override")[0]

def f2u(x): return struct.unpack("<I", struct.pack("<f", x))[0]

WS_EPOCH = 0x0
WS_HOP0 = 0x1000
WS_MODR = 0x8000
WS_Q = 0x10000
WS_HOP2 = 0x20000
WS_ML = 0x50000
WS_HOP3 = 0x60000
WS_HOP4 = 0x80000
WS_STAMP = 0x100000
WS_SIZE = 0x200000
L_XQ = 0
L_XQ2 = 3200
L_QL = 6400
L_MX = 6912
L_LS = 6976
L_SLOT = 7040
L_STAT = 7056
L_RED = 7168
L_ORED = 13312
L_W = 21504
LDS_BYTES = 86016
XQS = 100
SPIN = 40000

S_G, S_C, S_W, S_TAG, S_E = 3, 4, 5, 6, 7
S_T0, S_T1, S_T2, S_T3 = 8, 9, 10, 11
S_X = 12
S_FF = 14
S_CNT = 15
P_X, P_K, P_V, P_WQ, P_WO, P_BX, P_WG, P_WU = 16, 18, 20, 22, 24, 26, 28, 30
P_WD, P_C, P_WM, P_OUT, P_DBG, P_WS = 32, 34, 36, 38, 40, 42
SRD_WS, SRD_A, SRD_B, SRD_C = 44, 48, 52, 56
S_K1, S_K2 = 60, 61
S_F = 62
S_M = 63
S_Q = 64
S_ST = 96

class Gen:
    def __init__(self, stamps=False, fake_xcc=False, nt=True):
        self.a = Asm(); self.stamps = stamps; self.fake_xcc = fake_xcc
        self.nt = " nt" if nt else ""
        self.nstamp = 0
    def srd(self, srd, ptr, size):
        a = self.a
        a(f"s_mov_b32 s{srd}, s{ptr}\ns_mov_b32 s{srd+1}, s{ptr+1}\ns_mov_b32 s{srd+2}, {size:#x}\ns_mov_b32 s{srd+3}, 0x00020000")
    def rne(self, d, s):
        self.a(f"v_cvt_pk_bf16_f32 v{d}, v{s}, v{s}\nv_and_b32 v{d}, 0xffff0000, v{d}")
    def stamp(self, idx):
        if not self.stamps: return
        a = self.a
        a(f"s_memrealtime s[100:101]\ns_waitcnt lgkmcnt(0)\nv_writelane_b32 v250, s100, {idx}")
    def stamp_flush(self):
        if not self.stamps: return
        a = self.a
        a(f"""s_mov_b64 exec, -1
s_lshl_b32 s{S_T0}, s2, 3
s_add_u32 s{S_T0}, s{S_T0}, s{S_W}
s_lshl_b32 s{S_T0}, s{S_T0}, 8
s_add_u32 s{S_T0}, s{S_T0}, {WS_STAMP}
v_lshlrev_b32 v251, 2, v1
v_add_u32 v251, s{S_T0}, v251
buffer_store_dword v250, v251, s[{SRD_WS}:{SRD_WS+3}], 0 offen""")
    def wave_sum2(self, x, y):
        a = self.a
        for sh in ("row_shr:1 row_mask:0xf", "row_shr:2 row_mask:0xf", "row_shr:4 row_mask:0xf", "row_shr:8 row_mask:0xf", "row_bcast:15 row_mask:0xa", "row_bcast:31 row_mask:0xc"):
            a(f"v_add_f32_dpp v{x}, v{x}, v{x} {sh} bank_mask:0xf")
            a(f"v_add_f32_dpp v{y}, v{y}, v{y} {sh} bank_mask:0xf")
    def g64_steps(self, acc, A, X, n, Bt, first=True, waits=None):
        a = self.a
        def mk(i):
            b = Bt + 4 * (i & 1)
            for r in range(4): a(f"v_and_b32 v{b+r}, v{X[i]}, v{2+r}")
        mk(0)
        for i in range(n):
            if i + 1 < n: mk(i + 1)
            if waits and waits[i] is not None: a(f"s_waitcnt vmcnt({waits[i]})")
            b = Bt + 4 * (i & 1)
            c = "0" if (first and i == 0) else f"v[{acc}:{acc+3}]"
            a(f"v_mfma_f32_16x16x32_bf16 v[{acc}:{acc+3}], v[{A+4*i}:{A+4*i+3}], v[{b}:{b+3}], {c}")
    def half_add(self, acc, T):
        a = self.a
        for r in range(4): a(f"v_mov_b32 v{T+r}, v{acc+r}")
        for r in range(4): a(f"v_permlane32_swap_b32 v{T+r}, v{acc+r}")
        for r in range(4): a(f"v_add_f32_dpp v{acc+r}, v{acc+r}, v{T+r} row_ror:8 row_mask:0xf bank_mask:0xf")
    def tagw(self, regs, vtag):
        for r in regs: self.a(f"v_bfi_b32 v{r}, s{S_FF}, v{vtag}, v{r}")
    def chk(self, acc, regs, vtag, first=True):
        for i, r in enumerate(regs):
            if first and i == 0: self.a(f"v_xor_b32 v{acc}, v{r}, v{vtag}")
            else: self.a(f"v_bitop3_b32 v{acc}, v{acc}, v{r}, v{vtag} bitop3:0xf6")
    def retry_if_bad(self, acc, loop, done_label=None):
        a = self.a
        ok = a.newlabel("Lok")
        a(f"""v_and_b32 v{acc}, 0xff, v{acc}
v_cmp_ne_u32 vcc, 0, v{acc}
s_add_u32 s{S_CNT}, s{S_CNT}, 1
s_cbranch_vccz {ok}
s_cmp_lt_u32 s{S_CNT}, {SPIN}
s_cbranch_scc1 {loop}
{ok}:""")
    def ln_stage1(self, X, S1, S2):
        a = self.a
        a(f"""v_add_f32 v{S1}, v{X}, v{X+1}
v_mul_f32 v{S2}, v{X}, v{X}
v_add_f32 v{S1}, v{S1}, v{X+2}
v_fmac_f32 v{S2}, v{X+1}, v{X+1}
v_add_f32 v{S1}, v{S1}, v{X+3}
v_fmac_f32 v{S2}, v{X+2}, v{X+2}
v_fmac_f32 v{S2}, v{X+3}, v{X+3}""")
        self.wave_sum2(S1, S2)
        a(f"""s_lshl_b32 s{S_T0}, s{S_W}, 3
s_add_u32 s{S_T0}, s{S_T0}, {L_STAT}
v_mov_b32 v12, s{S_T0}
s_mov_b32 exec_lo, 0x0
s_mov_b32 exec_hi, 0x80000000
ds_write_b64 v12, v[{S1}:{S1+1}]
s_mov_b64 exec, -1""")
        assert S2 == S1 + 1
    def ln_stage2(self, X, O, T):
        a = self.a
        a(f"""v_mov_b32 v{T}, {L_STAT}
ds_read_b128 v[{T+4}:{T+7}], v{T}
ds_read_b64 v[{T+2}:{T+3}], v{T} offset:16
s_waitcnt lgkmcnt(0)
v_add_f32 v{T}, v{T+4}, v{T+6}
v_add_f32 v{T+1}, v{T+5}, v{T+7}
v_add_f32 v{T}, v{T}, v{T+2}
v_add_f32 v{T+1}, v{T+1}, v{T+3}
v_mul_f32 v{T}, {f2u(1.0/576):#x}, v{T}
v_mul_f32 v{T+1}, {f2u(1.0/576):#x}, v{T+1}
v_fma_f32 v{T+1}, -v{T}, v{T}, v{T+1}
v_max_f32 v{T+1}, 0, v{T+1}""")
        self.rne(T, T); self.rne(T + 1, T + 1)
        a(f"v_add_f32 v{T+1}, {f2u(1e-5):#x}, v{T+1}")
        self.rne(T + 1, T + 1)
        a(f"v_sqrt_f32 v{T+1}, v{T+1}")
        self.rne(T + 1, T + 1)
        a(f"v_rcp_f32 v{T+1}, v{T+1}")
        for r in range(4): a(f"v_sub_f32 v{O+r}, v{X+r}, v{T}")
        for r in range(4): self.rne(O + r, O + r)
        for r in range(4): a(f"v_mul_f32 v{O+r}, v{O+r}, v{T+1}")
        for r in range(4): self.rne(O + r, O + r)
    def modulate(self, LN, CS, SH, O, T):
        a = self.a
        for r in range(4): a(f"v_add_f32 v{T+r}, 1.0, v{CS+r}")
        for r in range(4): self.rne(T + r, T + r)
        for r in range(4): a(f"v_mul_f32 v{T+r}, v{LN+r}, v{T+r}")
        for r in range(4): self.rne(T + r, T + r)
        for r in range(4): a(f"v_add_f32 v{T+r}, v{T+r}, v{SH+r}")
        for r in range(4): a(f"v_cvt_pk_bf16_f32 v{O+r}, v{T+r}, v{T+r}")
    def xq_write(self, base_addr_reg, P):
        for r in range(4): self.a(f"ds_write_b32 v{base_addr_reg}, v{P+r} offset:{r*48}")
    def set_exec(self, m):
        if m == -1 or m == (1 << 64) - 1: self.a("s_mov_b64 exec, -1")
        elif 0 <= m <= 64: self.a(f"s_mov_b64 exec, {m}")
        else: self.a(f"s_mov_b32 exec_lo, {m & 0xffffffff:#x}\ns_mov_b32 exec_hi, {m >> 32:#x}")
    def exec_t144(self):
        a = self.a
        lbl = a.newlabel("Lx")
        a(f"s_mov_b64 exec, -1\ns_cmp_lg_u32 s{S_W}, 2\ns_cbranch_scc1 {lbl}")
        self.set_exec(0xffff)
        a(f"{lbl}:")

    def x1_gather(self, VX, G, A, T, need_mod):
        a = self.a
        loop = a.newlabel("Lg3")
        self.exec_t144()
        a(f"s_mov_b32 s{S_CNT}, 0\n{loop}:")
        for i, mb in enumerate(need_mod):
            a(f"v_add_u32 v{T}, {WS_MODR + mb*256:#x}, v13")
            a(f"buffer_load_dwordx4 v[{G+64+4*i}:{G+67+4*i}], v{T}, s[{SRD_WS}:{SRD_WS+3}], 0 offen sc1")
        for g in range(16):
            a(f"v_add_u32 v{T}, {WS_HOP3 + g*2304:#x}, v13")
            a(f"buffer_load_dwordx4 v[{G+4*g}:{G+4*g+3}], v{T}, s[{SRD_WS}:{SRD_WS+3}], 0 offen sc1")
        a("s_waitcnt vmcnt(0)")
        n = 64 + 4 * len(need_mod)
        self.chk(T, [G + i for i in range(n)], 14)
        self.retry_if_bad(T, loop)
        for g in range(1, 16):
            a(f"v_pk_add_f32 v[{G}:{G+1}], v[{G}:{G+1}], v[{G+4*g}:{G+4*g+1}]")
            a(f"v_pk_add_f32 v[{G+2}:{G+3}], v[{G+2}:{G+3}], v[{G+4*g+2}:{G+4*g+3}]")
        for i in range(4 * len(need_mod)): a(f"v_and_b32 v{G+64+i}, 0xffff0000, v{G+64+i}")
        for r in range(4): self.rne(G + r, G + r)
        for r in range(4): a(f"v_mul_f32 v{G+r}, v{G+64+r}, v{G+r}")
        for r in range(4): self.rne(G + r, G + r)
        for r in range(4): a(f"v_add_f32 v{A+r}, v{VX+r}, v{G+r}")
        for r in range(4): self.rne(A + r, A + r)

    def load_vec4_u16(self, dst, ptr_srd, voff):
        for r in range(4):
            self.a(f"buffer_load_ushort v{dst+r}, v{voff}, s[{ptr_srd}:{ptr_srd+3}], 0 offen offset:{r*16}")

    def prologue(self):
        a = self.a
        a(f"""s_cmp_ge_u32 s2, 256
s_cbranch_scc1 L_end
s_load_dwordx16 s[16:31], s[0:1], 0
s_load_dwordx8 s[32:39], s[0:1], 64
s_load_dwordx4 s[40:43], s[0:1], 96""")
        if self.stamps: a("v_mov_b32 v250, 0")
        self.stamp(0)
        a(f"""v_and_b32 v1, 63, v0
v_lshrrev_b32 v6, 6, v0
s_nop 0
v_readfirstlane_b32 s{S_W}, v6
s_mov_b32 s{S_FF}, 0xff
v_and_b32 v6, 1, v1
v_mov_b32 v7, 0xffff0000
v_mov_b32 v8, 0xffff
v_cmp_eq_u32 vcc, 1, v6
v_cndmask_b32 v9, v8, v7, vcc
v_bfe_u32 v6, v1, 1, 2""")
        for r in range(4):
            a(f"v_cmp_eq_u32 vcc, {r}, v6\nv_cndmask_b32 v{2+r}, 0, v9, vcc")
        a(f"""v_lshlrev_b32 v13, 4, v0
v_and_b32 v6, 7, v0
v_bfe_u32 v7, v0, 3, 1
v_lshrrev_b32 v8, 4, v0
v_mul_u32_u24 v15, {XQS*4}, v6
v_mul_u32_u24 v9, 192, v7
v_lshlrev_b32 v10, 2, v8
v_add3_u32 v15, v15, v9, v10
v_lshlrev_b32 v11, 7, v8
v_lshlrev_b32 v9, 6, v7
v_lshlrev_b32 v10, 1, v6
v_add3_u32 v11, v11, v9, v10
s_waitcnt lgkmcnt(0)
s_load_dword s{S_E}, s[{P_WS}:{P_WS+1}], {WS_EPOCH}""")
        self.srd(SRD_WS, P_WS, WS_SIZE)
        a("s_cmp_ge_u32 s2, 192\ns_cbranch_scc1 L_S")
    def get_tag(self):
        a = self.a
        a(f"""s_waitcnt lgkmcnt(0)
s_add_u32 s{S_TAG}, s{S_E}, 1
s_and_b32 s{S_TAG}, s{S_TAG}, 0xff
v_mov_b32 v14, s{S_TAG}""")

    def F(self):
        a = self.a; nt = self.nt
        K, V, Q, GU, DN, SC, OA = 16, 64, 112, 128, 164, 188, 200
        VX = 204
        a(f"""s_mul_i32 s{S_G}, s2, 43691
s_lshr_b32 s{S_G}, s{S_G}, 19
s_mul_i32 s{S_T0}, s{S_G}, 12
s_sub_u32 s{S_C}, s2, s{S_T0}
s_mul_i32 s{S_T0}, s{S_C}, 21846
s_lshr_b32 s{S_T0}, s{S_T0}, 16
s_mul_i32 s{S_T1}, s{S_T0}, 3
s_sub_u32 s{S_T1}, s{S_C}, s{S_T1}
s_lshl_b32 s{S_T0}, s{S_T0}, 6
s_cmp_eq_u32 s{S_T1}, 0
s_cselect_b32 s{S_T2}, 6, 5
s_cmp_eq_u32 s{S_T1}, 1
s_cselect_b32 s{S_T3}, 22, 0
s_add_u32 s{S_T0}, s{S_T0}, s{S_T3}
s_cmp_eq_u32 s{S_T1}, 2
s_cselect_b32 s{S_T3}, 43, 0
s_add_u32 s{S_T0}, s{S_T0}, s{S_T3}
s_mul_i32 s{S_T3}, s{S_W}, 3
s_add_u32 s{S_T1}, s{S_T2}, s{S_W}
s_add_u32 s{S_T1}, s{S_T1}, s{S_W}
s_cmp_lt_u32 s{S_W}, s{S_T2}
s_cselect_b32 s{S_T3}, s{S_T3}, s{S_T1}
s_cselect_b32 s{S_M}, 3, 2
s_add_u32 s{S_T0}, s{S_T0}, s{S_T3}
s_lshl_b32 s{S_T0}, s{S_T0}, 12
s_lshl_b32 s{S_T1}, s{S_G}, 24
s_add_u32 s{S_T0}, s{S_T0}, s{S_T1}
s_add_u32 s{S_T0}, s{S_T0}, {61440*256}""")
        self.srd(SRD_A, P_K, 1 << 28); self.srd(SRD_B, P_V, 1 << 28)
        a(f"""s_mov_b32 s{S_K1}, 4096
s_mov_b32 s{S_K2}, 8192
v_and_b32 v6, 15, v1
v_lshrrev_b32 v7, 4, v1
v_lshlrev_b32 v8, 8, v6
v_lshlrev_b32 v9, 4, v7
v_add3_u32 v16, v8, v9, s{S_T0}
v_lshlrev_b32 v8, 4, v6
v_lshlrev_b32 v9, 10, v7
v_add3_u32 v17, v8, v9, s{S_T0}
v_mov_b32 v208, v16
v_mov_b32 v209, v17""")
        VK, VV = 208, 209
        sk = a.newlabel("Lfx")
        a(f"v_mov_b32 v{VX}, 0\nv_mov_b32 v{VX+1}, 0\nv_mov_b32 v{VX+2}, 0\nv_mov_b32 v{VX+3}, 0")
        a(f"s_cmp_ge_u32 s{S_W}, 3\ns_cbranch_scc1 {sk}")
        self.srd(SRD_C, P_X, 1152)
        self.exec_t144()
        self.load_vec4_u16(VX, SRD_C, 11)
        a("s_mov_b64 exec, -1")
        a(f"{sk}:")
        sk = a.newlabel("Lfa")
        a(f"s_cmp_lg_u32 s{S_W}, 0\ns_cbranch_scc1 {sk}")
        if self.fake_xcc:
            a(f"s_and_b32 s{S_F}, s2, 3")
        else:
            a(f"s_getreg_b32 s{S_F}, hwreg(HW_REG_XCC_ID, 0, 4)\ns_and_b32 s{S_F}, s{S_F}, 7")
        a(f"""s_lshl_b32 s{S_T1}, s{S_F}, 5
v_mov_b32 v210, s{S_T1}
v_mov_b32 v211, 1
s_mov_b64 exec, 1
global_atomic_add v211, v210, v211, s[{P_DBG}:{P_DBG+1}] sc0 sc1
s_mov_b64 exec, -1
{sk}:""")
        soff = ["0", f"s{S_K1}", f"s{S_K2}"]
        lab2 = "L_F2"; join = "L_Fjoin"
        a(f"s_cmp_eq_u32 s{S_M}, 2\ns_cbranch_scc1 {lab2}")
        for NG in (3, 2):
            if NG == 2: a(f"{lab2}:")
            self.F_attn(NG, K, V, Q, SC, OA, VK, VV, soff)
            if NG == 3: a(f"s_branch {join}")
        a(f"{join}:")
        self.F_tail(K, GU, DN, OA, VX)

    def F_attn(self, NG, K, V, Q, SC, OA, VK, VV, soff):
        a = self.a; nt = self.nt
        for gi in range(NG):
            for s in range(4):
                a(f"buffer_load_dwordx4 v[{K+16*gi+4*s}:{K+16*gi+4*s+3}], v{VK}, s[{SRD_A}:{SRD_A+3}], {soff[gi]} offen offset:{64*s}{nt}")
        for gi in range(NG):
            for r in range(4):
                a(f"buffer_load_dwordx4 v[{V+16*gi+4*r}:{V+16*gi+4*r+3}], v{VV}, s[{SRD_B}:{SRD_B+3}], {soff[gi]} offen offset:{256*r}{nt}")
        self.stamp(1)
        self.get_tag()
        sk = a.newlabel("Lsl")
        a(f"s_cmp_lg_u32 s{S_W}, 0\ns_cbranch_scc1 {sk}")
        a(f"s_waitcnt vmcnt({8*NG})\nv_readfirstlane_b32 s{S_T0}, v211")
        okl = a.newlabel("Lslok"); lp = a.newlabel("Lsllp"); lp2 = a.newlabel("Lsl2"); fin = a.newlabel("Lslf")
        a(f"""s_cmp_lt_u32 s{S_T0}, 24
s_cbranch_scc1 {okl}""")
        a(f"""v_mov_b32 v210, 4
v_mov_b32 v211, 1
s_mov_b64 exec, 1
global_atomic_add v211, v210, v211, s[{P_DBG}:{P_DBG+1}] sc0 sc1
s_mov_b32 exec_lo, 0xff
s_mov_b32 exec_hi, 0x0
v_lshlrev_b32 v210, 5, v1
s_waitcnt vmcnt(0)
v_readfirstlane_b32 s{S_T1}, v211
s_mov_b32 s{S_CNT}, 0
{lp}:
global_load_dword v212, v210, s[{P_DBG}:{P_DBG+1}] sc1
s_waitcnt vmcnt(0)
s_mov_b32 s{S_T2}, 0""")
        for x in range(8):
            a(f"v_readlane_b32 s{S_T3}, v212, {x}\ns_add_u32 s{S_T2}, s{S_T2}, s{S_T3}")
        a(f"""s_add_u32 s{S_CNT}, s{S_CNT}, 1
s_cmp_ge_u32 s{S_T2}, 192
s_cbranch_scc1 {lp2}
s_cmp_lt_u32 s{S_CNT}, {SPIN}
s_cbranch_scc1 {lp}
{lp2}:
s_mov_b32 s{S_F}, 0""")
        for x in range(8):
            nx = a.newlabel("Lnx")
            a(f"""v_readlane_b32 s{S_T3}, v212, {x}
s_min_u32 s{S_T3}, s{S_T3}, 24
s_sub_u32 s{S_T2}, 24, s{S_T3}
s_cmp_ge_u32 s{S_T1}, s{S_T2}
s_cbranch_scc1 {nx}
s_add_u32 s{S_F}, s{S_T3}, s{S_T1}
s_add_u32 s{S_F}, s{S_F}, {24*x}
s_branch {fin}
{nx}:
s_sub_u32 s{S_T1}, s{S_T1}, s{S_T2}""")
        a(f"""s_branch {fin}
{okl}:
s_mul_i32 s{S_F}, s{S_F}, 24
s_add_u32 s{S_F}, s{S_F}, s{S_T0}
{fin}:
s_mov_b64 exec, -1
s_min_u32 s{S_F}, s{S_F}, 191
v_mov_b32 v210, {L_SLOT}
v_mov_b32 v211, s{S_F}
ds_write_b32 v210, v211
{sk}:""")
        a(f"""s_lshl_b32 s{S_T0}, s{S_G}, 10
s_lshl_b32 s{S_T1}, s{S_W}, 7
s_add_u32 s{S_T0}, s{S_T0}, s{S_T1}
s_add_u32 s{S_T0}, s{S_T0}, {WS_Q:#x}
s_add_u32 s{S_X}, s{P_WS}, s{S_T0}
s_addc_u32 s{S_X+1}, s{P_WS+1}, 0
s_mov_b32 s{S_CNT}, 0
v_and_b32 v6, 3, v1
v_lshrrev_b32 v7, 2, v1
v_lshlrev_b32 v6, 4, v6
v_lshlrev_b32 v7, 1, v7
s_lshl_b32 s{S_T1}, s{S_W}, 6
s_add_u32 s{S_T1}, s{S_T1}, {L_QL}
v_add3_u32 v8, v6, v7, s{S_T1}""")
        lp = a.newlabel("Lq"); okq = a.newlabel("Lqok"); rt = a.newlabel("Lqr")
        a(f"""{lp}:
s_load_dwordx16 s[{S_Q}:{S_Q+15}], s[{S_X}:{S_X+1}], 0 glc
s_load_dwordx16 s[{S_Q+16}:{S_Q+31}], s[{S_X}:{S_X+1}], 64 glc
s_add_u32 s{S_CNT}, s{S_CNT}, 1
s_waitcnt lgkmcnt(0)
s_xor_b32 s{S_T0}, s{S_Q}, s{S_TAG}
s_xor_b32 s{S_T1}, s{S_Q+31}, s{S_TAG}
s_or_b32 s{S_T0}, s{S_T0}, s{S_T1}
s_and_b32 s{S_T0}, s{S_T0}, 0xff
s_cmp_lg_u32 s{S_T0}, 0
s_cbranch_scc1 {rt}""")
        for i in range(32): a(f"v_writelane_b32 v6, s{S_Q+i}, {i}")
        a(f"""s_mov_b32 exec_lo, 0xffffffff
s_mov_b32 exec_hi, 0x0
v_xor_b32 v7, v6, v14
v_and_b32 v7, 0xff, v7
v_cmp_ne_u32 vcc, 0, v7
s_mov_b64 exec, -1
s_cbranch_vccz {okq}
{rt}:
s_cmp_lt_u32 s{S_CNT}, {SPIN}
s_cbranch_scc1 {lp}
{okq}:
s_mov_b32 exec_lo, 0xffffffff
s_mov_b32 exec_hi, 0x0
ds_write_b16_d16_hi v8, v6
s_mov_b64 exec, -1
s_waitcnt lgkmcnt(0)
s_barrier""")
        self.stamp(2)
        a(f"""v_bfe_u32 v6, v1, 3, 1
v_lshrrev_b32 v7, 4, v1
v_lshlrev_b32 v6, 8, v6
v_lshlrev_b32 v7, 4, v7
v_add3_u32 v8, v6, v7, {0}
v_add_u32 v8, {L_QL}, v8
v_mov_b32 v9, {L_SLOT}""".replace("v_add3_u32 v8, v6, v7, 0", "v_add_u32 v8, v6, v7"))
        for s in range(4): a(f"ds_read_b128 v[{Q+4*s}:{Q+4*s+3}], v8 offset:{64*s}")
        a(f"ds_read_b32 v9, v9\ns_waitcnt lgkmcnt(0)\nv_readfirstlane_b32 s{S_F}, v9")
        for gi in range(NG):
            a(f"s_waitcnt vmcnt({4*NG + 4*(NG-1-gi)})")
            for s in range(4):
                c = "0" if s == 0 else f"v[{SC+4*gi}:{SC+4*gi+3}]"
                a(f"v_mfma_f32_16x16x32_bf16 v[{SC+4*gi}:{SC+4*gi+3}], v[{K+16*gi+4*s}:{K+16*gi+4*s+3}], v[{Q+4*s}:{Q+4*s+3}], {c}")
        self.stamp(3)
        a(f"s_mov_b32 s{S_T0}, 0x3db504f3")
        n = 4 * NG
        for p in range(0, n, 2):
            x, y = SC + p, SC + p + 1
            a(f"""v_cvt_pk_bf16_f32 v6, v{x}, v{y}
v_lshlrev_b32 v{x}, 16, v6
v_and_b32 v{y}, 0xffff0000, v6
v_mul_f32 v{x}, s{S_T0}, v{x}
v_mul_f32 v{y}, s{S_T0}, v{y}
v_cvt_pk_bf16_f32 v7, v{x}, v{y}
v_lshlrev_b32 v{x}, 16, v7
v_and_b32 v{y}, 0xffff0000, v7""")
        a(f"v_max3_f32 v6, v{SC}, v{SC+1}, v{SC+2}")
        i = 3
        while i < n:
            if i + 1 < n: a(f"v_max3_f32 v6, v6, v{SC+i}, v{SC+i+1}"); i += 2
            else: a(f"v_max_f32 v6, v6, v{SC+i}"); i += 1
        a(f"""v_mov_b32 v7, v6
v_permlane32_swap_b32 v7, v6
v_max_f32 v6, v6, v7
v_mov_b32 v7, v6
v_permlane16_swap_b32 v7, v6
v_max_f32 v6, v6, v7
v_bfe_u32 v8, v1, 3, 1
v_lshlrev_b32 v8, 5, v8
s_lshl_b32 s{S_T1}, s{S_W}, 2
s_add_u32 s{S_T1}, s{S_T1}, {L_MX}
v_add_u32 v9, s{S_T1}, v8
s_mov_b32 exec_lo, 0x101
s_mov_b32 exec_hi, 0x0
ds_write_b32 v9, v6
s_mov_b64 exec, -1
s_waitcnt lgkmcnt(0)
s_barrier
v_add_u32 v9, {L_MX}, v8
ds_read_b128 v[{Q}:{Q+3}], v9
ds_read_b128 v[{Q+4}:{Q+7}], v9 offset:16
s_waitcnt lgkmcnt(0)
v_max3_f32 v6, v{Q}, v{Q+1}, v{Q+2}
v_max3_f32 v6, v6, v{Q+3}, v{Q+4}
v_max3_f32 v6, v6, v{Q+5}, v{Q+6}
v_max_f32 v6, v6, v{Q+7}
s_mov_b32 s{S_T0}, {f2u(1.4426950408889634):#x}
v_mul_f32 v7, s{S_T0}, v6
v_mov_b32 v10, 0""")
        for i in range(n): a(f"v_fma_f32 v{SC+i}, v{SC+i}, s{S_T0}, -v7")
        for i in range(n): a(f"v_exp_f32 v{SC+i}, v{SC+i}")
        for i in range(n): a(f"v_add_f32 v10, v10, v{SC+i}")
        for i in range(n): a(f"v_cvt_pk_bf16_f32 v{SC+i}, v{SC+i}, v{SC+i}")
        self.stamp(4)
        waits = []
        for gi in range(NG):
            for r in range(4): waits.append(4 * (NG - 1 - gi) if r == 0 else None)
        self.g64_steps(OA, V, [SC + i for i in range(n)], n, Q + 8, first=True, waits=waits)
        a(f"""v_mov_b32 v7, v10
v_permlane32_swap_b32 v7, v10
v_add_f32 v10, v10, v7
v_mov_b32 v7, v10
v_permlane16_swap_b32 v7, v10
v_add_f32 v10, v10, v7
s_lshl_b32 s{S_T1}, s{S_W}, 2
s_add_u32 s{S_T1}, s{S_T1}, {L_LS}
v_add_u32 v9, s{S_T1}, v8
s_mov_b32 exec_lo, 0x101
s_mov_b32 exec_hi, 0x0
ds_write_b32 v9, v10
s_mov_b64 exec, -1
v_lshlrev_b32 v9, 4, v0
v_add_u32 v9, {L_ORED}, v9
ds_write_b128 v9, v[{OA}:{OA+3}]""")
        self.stamp(5)

    def F_gu_loads(self, GU):
        a = self.a; nt = self.nt
        a(f"""v_and_b32 v6, 7, v1
v_and_b32 v7, 3, v1
v_min_u32 v7, 2, v7
v_lshlrev_b32 v7, 4, v7
v_lshrrev_b32 v8, 3, v1
s_lshl_b32 s{S_T0}, s{S_W}, 3
v_add_u32 v8, s{S_T0}, v8
v_mul_u32_u24 v8, 9216, v8
s_mul_i32 s{S_T0}, s{S_F}, 48
v_add3_u32 v7, v7, v8, s{S_T0}
v_mov_b32 v8, s{P_WG}
v_mov_b32 v9, s{P_WG+1}
v_mov_b32 v10, s{P_WU}
v_mov_b32 v12, s{P_WU+1}
v_cmp_lt_u32 vcc, 3, v6
v_cndmask_b32 v8, v8, v10, vcc
v_cndmask_b32 v9, v9, v12, vcc
v_add_co_u32 v212, vcc, v8, v7
v_addc_co_u32 v213, vcc, 0, v9, vcc
s_mov_b32 s{S_X}, {64*9216}
s_mov_b32 s{S_X+1}, 0""")
        for i in range(9):
            a(f"global_load_dwordx4 v[{GU+4*i}:{GU+4*i+3}], v[212:213], off{nt}")
            if i < 8: a(f"v_lshl_add_u64 v[212:213], v[212:213], 0, s[{S_X}:{S_X+1}]")

    def F_tail(self, K, GU, DN, OA, VX):
        a = self.a; nt = self.nt
        sk = a.newlabel("Lgu")
        a(f"s_cmp_ge_u32 s{S_W}, 4\ns_cbranch_scc1 {sk}")
        self.F_gu_loads(GU)
        a(f"{sk}:\ns_waitcnt lgkmcnt(0)\ns_barrier")
        self.stamp(6)
        sk = a.newlabel("Lgu")
        a(f"s_cmp_lt_u32 s{S_W}, 4\ns_cbranch_scc1 {sk}")
        self.F_gu_loads(GU)
        a(f"{sk}:")
        sk = a.newlabel("Lpub")
        a(f"s_cmp_lg_u32 s{S_W}, 3\ns_cbranch_scc1 {sk}")
        T = K
        a(f"v_lshlrev_b32 v9, 4, v1\nv_add_u32 v8, {L_ORED}, v9")
        for w in range(8): a(f"ds_read_b128 v[{T+4*w}:{T+4*w+3}], v8 offset:{1024*w}")
        a(f"v_mov_b32 v7, {L_MX}")
        for i in range(4): a(f"ds_read_b128 v[{T+32+4*i}:{T+35+4*i}], v7 offset:{16*i}")
        for i in range(4): a(f"ds_read_b128 v[{T+48+4*i}:{T+51+4*i}], v7 offset:{64+16*i}")
        a("s_waitcnt lgkmcnt(0)")
        for w in range(1, 8):
            a(f"v_pk_add_f32 v[{T}:{T+1}], v[{T}:{T+1}], v[{T+4*w}:{T+4*w+1}]")
            a(f"v_pk_add_f32 v[{T+2}:{T+3}], v[{T+2}:{T+3}], v[{T+4*w+2}:{T+4*w+3}]")
        self.tagw([T, T + 1, T + 2, T + 3], 14)
        a(f"""s_mul_i32 s{S_T0}, s{S_G}, 12
s_add_u32 s{S_T0}, s{S_T0}, s{S_C}
s_lshl_b32 s{S_T1}, s{S_T0}, 10
s_add_u32 s{S_T1}, s{S_T1}, {WS_HOP2:#x}
v_add_u32 v9, s{S_T1}, v9
buffer_store_dwordx4 v[{T}:{T+3}], v9, s[{SRD_WS}:{SRD_WS+3}], 0 offen sc1""")
        U = T + 64
        for h in range(2):
            b = T + 32 + 8 * h
            a(f"v_max3_f32 v{U+2*h}, v{b}, v{b+1}, v{b+2}\nv_max3_f32 v{U+2*h}, v{U+2*h}, v{b+3}, v{b+4}\nv_max3_f32 v{U+2*h}, v{U+2*h}, v{b+5}, v{b+6}\nv_max_f32 v{U+2*h}, v{U+2*h}, v{b+7}")
            b = T + 48 + 8 * h
            a(f"v_add_f32 v{U+2*h+1}, v{b}, v{b+1}")
            for i in range(2, 8): a(f"v_add_f32 v{U+2*h+1}, v{U+2*h+1}, v{b+i}")
        self.tagw([U, U + 1, U + 2, U + 3], 14)
        a(f"""s_lshl_b32 s{S_T0}, s{S_G}, 4
s_add_u32 s{S_T0}, s{S_T0}, s{S_C}
s_lshl_b32 s{S_T0}, s{S_T0}, 4
s_add_u32 s{S_T0}, s{S_T0}, {WS_ML:#x}
v_mov_b32 v9, s{S_T0}
s_mov_b64 exec, 1
buffer_store_dwordx4 v[{U}:{U+3}], v9, s[{SRD_WS}:{SRD_WS+3}], 0 offen sc1
s_mov_b64 exec, -1
{sk}:""")
        self.stamp(7)
        self.srd(SRD_C, P_WD, 4608 * 1152)
        a(f"""s_mov_b32 s{S_K1}, 9216
s_mov_b32 s{S_K2}, 18432
v_lshrrev_b32 v6, 3, v1
s_mul_i32 s{S_T0}, s{S_F}, 24
v_add_u32 v6, s{S_T0}, v6
v_mul_u32_u24 v6, 1152, v6
v_and_b32 v7, 7, v1
v_lshlrev_b32 v7, 4, v7
s_lshl_b32 s{S_T0}, s{S_W}, 7
v_add3_u32 v6, v6, v7, s{S_T0}""")
        soff = ["0", f"s{S_K1}", f"s{S_K2}"]
        for s in range(3): a(f"buffer_load_dwordx4 v[{DN+4*s}:{DN+4*s+3}], v6, s[{SRD_C}:{SRD_C+3}], {soff[s]} offen{nt}")
        sk = a.newlabel("Ld8")
        a(f"s_cmp_lg_u32 s{S_W}, 3\ns_cbranch_scc1 {sk}")
        for s in range(3): a(f"buffer_load_dwordx4 v[{DN+12+4*s}:{DN+15+4*s}], v6, s[{SRD_C}:{SRD_C+3}], {soff[s]} offen offset:640{nt}")
        a(f"{sk}:")
        G = K; X1 = 112; T = 96
        sk = a.newlabel("Lx1")
        a(f"v_mov_b32 v{X1}, 0\nv_mov_b32 v{X1+1}, 0\nv_mov_b32 v{X1+2}, 0\nv_mov_b32 v{X1+3}, 0")
        a(f"s_cmp_ge_u32 s{S_W}, 3\ns_cbranch_scc1 {sk}")
        for r in range(4): a(f"v_lshlrev_b32 v{VX+r}, 16, v{VX+r}")
        self.x1_gather(VX, G, X1, T, [0, 18, 9])
        a("s_mov_b64 exec, -1")
        self.stamp(8)
        self.ln_stage1(X1, T, T + 1)
        a(f"{sk}:\ns_waitcnt lgkmcnt(0)\ns_barrier")
        sk = a.newlabel("Lh2")
        a(f"s_cmp_ge_u32 s{S_W}, 3\ns_cbranch_scc1 {sk}")
        self.exec_t144()
        self.ln_stage2(X1, T + 8, T)
        self.modulate(T + 8, G + 68, G + 72, T + 12, T)
        self.xq_write(15, T + 12)
        a(f"s_mov_b64 exec, -1\n{sk}:\ns_waitcnt lgkmcnt(0)\ns_barrier")
        self.stamp(9)
        XR = 16; ACC = 32; BT = 36
        a(f"""v_lshrrev_b32 v6, 3, v1
v_mul_u32_u24 v6, {XQS*4}, v6
s_mul_i32 s{S_T0}, s{S_W}, 48
v_add_u32 v6, s{S_T0}, v6""")
        for i in range(3): a(f"ds_read_b128 v[{XR+4*i}:{XR+4*i+3}], v6 offset:{L_XQ+16*i}")
        a("s_waitcnt vmcnt(0) lgkmcnt(0)")
        self.g64_steps(ACC, GU, [XR + i for i in range(9)], 9, BT)
        self.half_add(ACC, BT)
        self.red_write(ACC, 0)
        a("s_waitcnt lgkmcnt(0)\ns_barrier")
        self.stamp(10)
        sk = a.newlabel("Lact")
        a(f"s_cmp_lg_u32 s{S_W}, 0\ns_cbranch_scc1 {sk}")
        R0 = 40
        self.red_sum(R0, 1)
        for r in range(3): self.rne(R0 + r, R0 + r)
        for r in range(3): a(f"v_mov_b32_dpp v{R0+4+r}, v{R0+r} row_ror:8 row_mask:0xf bank_mask:0xf")
        c1 = f2u(0.044715); c2 = f2u(-2.0 * 0.7978845608028654 * 1.4426950408889634)
        for r in range(3):
            g = R0 + r; t = R0 + 8 + r
            a(f"""v_mul_f32 v{t}, v{g}, v{g}
v_mul_f32 v{t}, {c1:#x}, v{t}
v_fma_f32 v{t}, v{t}, v{g}, v{g}
v_mul_f32 v{t}, {c2:#x}, v{t}
v_exp_f32 v{t}, v{t}
v_add_f32 v{t}, 1.0, v{t}
v_rcp_f32 v{t}, v{t}
v_mul_f32 v{t}, v{g}, v{t}""")
            self.rne(t, t)
            a(f"v_mul_f32 v{t}, v{t}, v{R0+4+r}\nv_cvt_pk_bf16_f32 v{t}, v{t}, v{t}")
        a(f"""v_mul_u32_u24 v6, {XQS*4}, v1
s_mov_b32 exec_lo, 0xff
s_mov_b32 exec_hi, 0""")
        for r in range(3): a(f"ds_write_b32 v6, v{R0+8+r} offset:{L_XQ2 + 48*r}")
        a(f"s_mov_b64 exec, -1\n{sk}:\ns_waitcnt lgkmcnt(0)\ns_barrier")
        a(f"v_lshrrev_b32 v6, 3, v1\nv_mul_u32_u24 v6, {XQS*4}, v6")
        for s in range(3): a(f"ds_read_b32 v{XR+s}, v6 offset:{L_XQ2+48*s}")
        a("s_waitcnt lgkmcnt(0)")
        self.g64_steps(ACC, DN, [XR, XR + 1, XR + 2], 3, BT)
        a(f"""s_mul_i32 s{S_T0}, s{S_F}, 2304
s_add_u32 s{S_T0}, s{S_T0}, {WS_HOP4:#x}
s_lshl_b32 s{S_T1}, s{S_W}, 8
s_add_u32 s{S_T0}, s{S_T0}, s{S_T1}
v_and_b32 v6, 7, v1
v_bfe_u32 v7, v1, 4, 1
v_lshl_add_u32 v6, v7, 3, v6
v_lshlrev_b32 v6, 4, v6
v_add_u32 v6, s{S_T0}, v6""")
        self.half_add(ACC, BT)
        self.tagw([ACC, ACC + 1, ACC + 2, ACC + 3], 14)
        a(f"""s_mov_b32 exec_lo, 0xff00ff
s_mov_b32 exec_hi, 0x0
buffer_store_dwordx4 v[{ACC}:{ACC+3}], v6, s[{SRD_WS}:{SRD_WS+3}], 0 offen sc1
s_mov_b64 exec, -1
s_cmp_lg_u32 s{S_W}, 3
s_cbranch_scc1 L_Fend""")
        A2 = 44
        self.g64_steps(A2, DN + 12, [XR, XR + 1, XR + 2], 3, BT)
        self.half_add(A2, BT)
        self.tagw([A2, A2 + 1, A2 + 2, A2 + 3], 14)
        a(f"""s_mov_b32 exec_lo, 0xff00ff
s_mov_b32 exec_hi, 0x0
buffer_store_dwordx4 v[{A2}:{A2+3}], v6, s[{SRD_WS}:{SRD_WS+3}], 0 offen offset:1280 sc1
s_mov_b64 exec, -1
L_Fend:""")
        self.stamp(11)
        self.stamp_flush()
        a("s_endpgm")

    def red_write(self, ACC, blk):
        a = self.a
        a(f"""v_and_b32 v6, 7, v1
v_bfe_u32 v7, v1, 4, 1
v_lshl_add_u32 v6, v7, 3, v6
v_lshlrev_b32 v6, 4, v6
s_lshl_b32 s{S_T0}, s{S_W}, 8
v_add_u32 v6, s{S_T0}, v6
s_mov_b32 exec_lo, 0xff00ff
s_mov_b32 exec_hi, 0x0
ds_write_b128 v6, v[{ACC}:{ACC+3}] offset:{L_RED + blk*2048}
s_mov_b64 exec, -1""")
    def red_sum(self, R0, nblk):
        a = self.a
        a(f"""v_lshrrev_b32 v6, 4, v1
v_lshlrev_b32 v6, 11, v6
v_and_b32 v7, 15, v1
v_lshl_add_u32 v6, v7, 4, v6""")
        if nblk < 4: a(f"v_min_u32 v6, {(nblk-1)*2048 + 240}, v6")
        for w in range(8): a(f"ds_read_b128 v[{R0+4*w}:{R0+4*w+3}], v6 offset:{L_RED + 256*w}")
        a("s_waitcnt lgkmcnt(0)")
        for w in range(1, 8):
            a(f"v_pk_add_f32 v[{R0}:{R0+1}], v[{R0}:{R0+1}], v[{R0+4*w}:{R0+4*w+1}]")
            a(f"v_pk_add_f32 v[{R0+2}:{R0+3}], v[{R0+2}:{R0+3}], v[{R0+4*w+2}:{R0+4*w+3}]")

    def tile_addr(self, vdst, row_stride, s_off):
        a = self.a
        a(f"""v_lshrrev_b32 v6, 3, v1
s_lshl_b32 s{S_T3}, s{S_W}, 3
v_add_u32 v6, s{S_T3}, v6
v_mul_u32_u24 v6, {row_stride}, v6
v_and_b32 v7, 7, v1
v_lshlrev_b32 v7, 4, v7
v_add3_u32 v{vdst}, v6, v7, s{s_off}""")
    def xq_read(self, XR, base, n=3):
        a = self.a
        a(f"""v_lshrrev_b32 v6, 3, v1
v_mul_u32_u24 v6, {XQS*4}, v6
s_mul_i32 s{S_T0}, s{S_W}, 48
v_add_u32 v6, s{S_T0}, v6""")
        for i in range(n): a(f"ds_read_b128 v[{XR+4*i}:{XR+4*i+3}], v6 offset:{base+16*i}")

    def S(self):
        a = self.a; nt = self.nt
        SID = S_G
        MA, WQ, T3, T4 = 16, 28, 64, 112
        VC, VX, LN = 148, 152, 156
        XR, ACC, BT = 160, 172, 176
        G = 184
        a(f"L_S:\ns_sub_u32 s{SID}, s2, 192")
        self.srd(SRD_A, P_WM, 576 * 6912); self.srd(SRD_B, P_WQ, 576 * 8192)
        for r in range(4): a(f"v_mov_b32 v{VC+r}, 0\nv_mov_b32 v{VX+r}, 0")
        sk = a.newlabel("Lsx")
        a(f"s_cmp_ge_u32 s{S_W}, 3\ns_cbranch_scc1 {sk}")
        self.srd(SRD_C, P_C, 1152)
        self.exec_t144()
        self.load_vec4_u16(VC, SRD_C, 11)
        self.srd(SRD_C, P_X, 1152)
        self.load_vec4_u16(VX, SRD_C, 11)
        a(f"s_mov_b64 exec, -1\n{sk}:")
        a(f"""s_mul_i32 s{S_C}, s{SID}, 3641
s_lshr_b32 s{S_C}, s{S_C}, 16
s_mul_i32 s{S_T0}, s{S_C}, 18
s_sub_u32 s{S_M}, s{SID}, s{S_T0}""")
        nomod = a.newlabel("Lnm")
        a(f"s_cmp_ge_u32 s{SID}, 54\ns_cbranch_scc1 {nomod}")
        a(f"""s_mul_i32 s{S_T0}, s{S_C}, {192*6912}
s_lshl_b32 s{S_T1}, s{S_M}, 7
s_add_u32 s{S_T0}, s{S_T0}, s{S_T1}""")
        self.tile_addr(self.VMA, 6912, S_T0)
        for i in range(3):
            a(f"v_add_u32 v6, {64*i*6912}, v{self.VMA}\nbuffer_load_dwordx4 v[{MA+4*i}:{MA+4*i+3}], v6, s[{SRD_A}:{SRD_A+3}], 0 offen{nt}")
        a(f"{nomod}:\ns_barrier")
        a(f"s_lshl_b32 s{S_T0}, s{SID}, 7")
        self.tile_addr(self.VWQ, 8192, S_T0)
        for i in range(4):
            a(f"v_add_u32 v6, {64*i*8192}, v{self.VWQ}\nbuffer_load_dwordx4 v[{WQ+4*i}:{WQ+4*i+3}], v6, s[{SRD_B}:{SRD_B+3}], 0 offen{nt}")
        self.stamp(1)
        sk = a.newlabel("Lsi")
        a(f"s_cmp_ge_u32 s{S_W}, 3\ns_cbranch_scc1 {sk}")
        w7 = a.newlabel("Lw7"); w8 = a.newlabel("Lw8")
        a(f"s_cmp_ge_u32 s{SID}, 54\ns_cbranch_scc1 {w7}\ns_waitcnt vmcnt(7)\ns_branch {w8}\n{w7}:\ns_waitcnt vmcnt(4)\n{w8}:")
        for r in range(4): a(f"v_lshlrev_b32 v{VC+r}, 16, v{VC+r}\nv_lshlrev_b32 v{VX+r}, 16, v{VX+r}")
        for r in range(4):
            t = BT + r
            a(f"v_mul_f32 v{t}, {f2u(-1.4426950408889634):#x}, v{VC+r}\nv_exp_f32 v{t}, v{t}\nv_add_f32 v{t}, 1.0, v{t}\nv_rcp_f32 v{t}, v{t}\nv_mul_f32 v{t}, v{VC+r}, v{t}\nv_cvt_pk_bf16_f32 v{t}, v{t}, v{t}")
        self.exec_t144()
        self.xq_write(15, BT)
        a("s_mov_b64 exec, -1")
        self.ln_stage1(VX, BT + 4, BT + 5)
        a(f"{sk}:")
        self.get_tag()
        a("s_barrier")
        sk = a.newlabel("Lln")
        a(f"s_cmp_ge_u32 s{S_W}, 3\ns_cbranch_scc1 {sk}")
        self.ln_stage2(VX, LN, BT)
        a(f"{sk}:")
        nomod = a.newlabel("Lnm")
        a(f"s_cmp_ge_u32 s{SID}, 54\ns_cbranch_scc1 {nomod}")
        a(f"""v_lshrrev_b32 v6, 3, v1
v_mul_u32_u24 v6, {XQS*4}, v6
s_mul_i32 s{S_T0}, s{S_W}, 48
s_mul_i32 s{S_T1}, s{S_C}, 12
s_add_u32 s{S_T0}, s{S_T0}, s{S_T1}
v_add_u32 v6, s{S_T0}, v6""")
        for i in range(3): a(f"ds_read_b32 v{XR+i}, v6 offset:{L_XQ+4*i}")
        a("s_waitcnt vmcnt(4) lgkmcnt(0)")
        self.g64_steps(ACC, MA, [XR, XR + 1, XR + 2], 3, BT)
        self.half_add(ACC, BT)
        self.red_write(ACC, 0)
        a(f"{nomod}:\ns_waitcnt lgkmcnt(0)\ns_barrier")
        self.stamp(2)
        sk = a.newlabel("Lmp")
        a(f"s_cmp_ge_u32 s{SID}, 54\ns_cbranch_scc1 {sk}\ns_cmp_lg_u32 s{S_W}, 7\ns_cbranch_scc1 {sk}")
        self.red_sum(G, 1)
        self.tagw([G, G + 1, G + 2, G + 3], 14)
        a(f"""s_mul_i32 s{S_T0}, s{S_C}, 4608
s_lshl_b32 s{S_T1}, s{S_M}, 8
s_add_u32 s{S_T0}, s{S_T0}, s{S_T1}
s_add_u32 s{S_T0}, s{S_T0}, {WS_HOP0:#x}
v_lshlrev_b32 v6, 4, v1
v_add_u32 v6, s{S_T0}, v6
s_mov_b32 exec_lo, 0xffff
s_mov_b32 exec_hi, 0x0
buffer_store_dwordx4 v[{G}:{G+3}], v6, s[{SRD_WS}:{SRD_WS+3}], 0 offen sc1
s_mov_b64 exec, -1
{sk}:""")
        for i in range(4, 9):
            a(f"v_add_u32 v6, {64*i*8192}, v{self.VWQ}\nbuffer_load_dwordx4 v[{WQ+4*i}:{WQ+4*i+3}], v6, s[{SRD_B}:{SRD_B+3}], 0 offen{nt}")
        sk = a.newlabel("Lh0")
        a(f"s_cmp_ge_u32 s{S_W}, 3\ns_cbranch_scc1 {sk}")
        self.exec_t144()
        loop = a.newlabel("Lg0")
        a(f"s_mov_b32 s{S_CNT}, 0\n{loop}:")
        for rs in range(3):
            for part in range(2):
                k = 2 * rs + part
                a(f"v_add_u32 v6, {WS_HOP0 + rs*4608 + part*2304:#x}, v13")
                a(f"buffer_load_dwordx4 v[{G+4*k}:{G+4*k+3}], v6, s[{SRD_WS}:{SRD_WS+3}], 0 offen sc1")
        a("s_waitcnt vmcnt(0)")
        self.chk(6, [G + i for i in range(24)], 14)
        self.retry_if_bad(6, loop)
        for k in (2, 4):
            for h in range(0, 8, 2): a(f"v_pk_add_f32 v[{G+h}:{G+h+1}], v[{G+h}:{G+h+1}], v[{G+4*k+h}:{G+4*k+h+1}]")
        for i in range(8): self.rne(G + i, G + i)
        self.modulate(LN, G + 4, G, BT + 4, BT)
        a(f"v_add_u32 v6, {L_XQ2}, v15")
        self.xq_write(6, BT + 4)
        a(f"s_mov_b64 exec, -1\n{sk}:\ns_waitcnt lgkmcnt(0)\ns_barrier")
        self.stamp(3)
        self.xq_read(XR, L_XQ2)
        a("s_waitcnt vmcnt(0) lgkmcnt(0)")
        self.g64_steps(ACC, WQ, [XR + i for i in range(9)], 9, BT)
        self.half_add(ACC, BT)
        self.red_write(ACC, 0)
        a("s_waitcnt lgkmcnt(0)\ns_barrier")
        sk = a.newlabel("Lqp")
        a(f"s_cmp_lg_u32 s{S_W}, 7\ns_cbranch_scc1 {sk}")
        self.red_sum(G, 1)
        for r in range(4): self.rne(G + r, G + r)
        self.tagw([G, G + 1, G + 2, G + 3], 14)
        a(f"""s_lshl_b32 s{S_T0}, s{SID}, 8
s_add_u32 s{S_T0}, s{S_T0}, {WS_Q:#x}
v_lshlrev_b32 v6, 4, v1
v_add_u32 v6, s{S_T0}, v6
s_mov_b32 exec_lo, 0xffff
s_mov_b32 exec_hi, 0x0
buffer_store_dwordx4 v[{G}:{G+3}], v6, s[{SRD_WS}:{SRD_WS+3}], 0 offen sc1
s_mov_b64 exec, -1
{sk}:""")
        self.stamp(4)
        notwo = "L_Snotwo"
        a(f"s_cmp_ge_u32 s{SID}, 48\ns_cbranch_scc1 {notwo}")
        a(f"""s_mul_i32 s{S_C}, s{SID}, 21846
s_lshr_b32 s{S_C}, s{S_C}, 16
s_mul_i32 s{S_T0}, s{S_C}, 3
s_sub_u32 s{S_M}, s{SID}, s{S_T0}
s_mul_i32 s{S_T0}, s{S_C}, {256*1152}
s_mul_i32 s{S_T1}, s{S_M}, 384
s_add_u32 s{S_T0}, s{S_T0}, s{S_T1}""")
        self.srd(SRD_B, P_WO, 4096 * 1152)
        self.tile_addr(self.VWO, 1152, S_T0)
        a(f"s_mov_b32 s{S_K1}, {64*1152}\ns_mov_b32 s{S_K2}, {128*1152}\ns_mov_b32 s{S_F}, {192*1152}")
        so = ["0", f"s{S_K1}", f"s{S_K2}", f"s{S_F}"]
        for b in range(3):
            for i in range(4):
                a(f"buffer_load_dwordx4 v[{T3+16*b+4*i}:{T3+16*b+4*i+3}], v{self.VWO}, s[{SRD_B}:{SRD_B+3}], {so[i]} offen offset:{128*b}{nt}")
        sk = a.newlabel("Lmr1")
        a(f"s_cmp_ge_u32 s{SID}, 4\ns_cbranch_scc1 {sk}")
        a(f"s_add_u32 s{S_T2}, s{SID}, 32")
        self.modrest_tiles([(T4, S_T2)], XR, ACC, BT, G)
        a(f"{sk}:")
        self.S_wo(T3, XR, ACC, BT, G)
        a("s_branch L_Sred")
        a(f"{notwo}:")
        a(f"s_sub_u32 s{S_T2}, s{SID}, 48\ns_add_u32 s{S_T1}, s{S_T2}, 16")
        a(f"s_mov_b32 s{S_F}, s{S_T1}")
        self.modrest_tiles([(T3, S_T2), (T4, S_F)], XR, ACC, BT, G)
        a("s_branch L_Send")
        a("L_Sred:")
        a(f"s_cmp_ge_u32 s{SID}, 36\ns_cbranch_scc1 L_Send")
        self.S_reduce(VX, G)
        a("L_Send:")
        self.stamp(11)
        self.stamp_flush()
        a("s_endpgm")

    def modrest_tiles(self, tiles, XR, ACC, BT, G):
        a = self.a; nt = self.nt
        for k, (reg, st) in enumerate(tiles):
            a(f"s_lshl_b32 s{S_T0}, s{st}, 7\ns_add_u32 s{S_T0}, s{S_T0}, 2304")
            self.tile_addr(self.VMR, 6912, S_T0)
            for i in range(9):
                a(f"v_add_u32 v6, {64*i*6912}, v{self.VMR}\nbuffer_load_dwordx4 v[{reg+4*i}:{reg+4*i+3}], v6, s[{SRD_A}:{SRD_A+3}], 0 offen{nt}")
        self.xq_read(XR, L_XQ)
        a("s_waitcnt lgkmcnt(0)")
        a("s_barrier")
        for k, (reg, st) in enumerate(tiles):
            a(f"s_waitcnt vmcnt({9*(len(tiles)-1-k)})")
            self.g64_steps(ACC, reg, [XR + i for i in range(9)], 9, BT)
            self.half_add(ACC, BT)
            self.red_write(ACC, k)
        a("s_waitcnt lgkmcnt(0)\ns_barrier")
        sk = a.newlabel("Lmrp")
        a(f"s_cmp_lg_u32 s{S_W}, 7\ns_cbranch_scc1 {sk}")
        self.red_sum(G, len(tiles))
        for r in range(4): self.rne(G + r, G + r)
        self.tagw([G, G + 1, G + 2, G + 3], 14)
        a(f"v_mov_b32 v6, s{tiles[0][1]}")
        if len(tiles) > 1:
            a(f"v_mov_b32 v7, s{tiles[1][1]}\nv_cmp_lt_u32 vcc, 15, v1\nv_cndmask_b32 v6, v6, v7, vcc")
        a(f"""v_lshlrev_b32 v6, 8, v6
v_and_b32 v7, 15, v1
v_lshl_add_u32 v6, v7, 4, v6
v_add_u32 v6, {WS_MODR:#x}, v6
s_mov_b32 exec_lo, {(1 << (16*len(tiles))) - 1:#x}
s_mov_b32 exec_hi, 0
buffer_store_dwordx4 v[{G}:{G+3}], v6, s[{SRD_WS}:{SRD_WS+3}], 0 offen sc1
s_mov_b64 exec, -1
{sk}:""")

    def S_wo(self, T3, XR, ACC, BT, G):
        a = self.a
        sk = a.newlabel("Lh2g")
        a(f"s_cmp_ge_u32 s{S_W}, 6\ns_cbranch_scc1 {sk}")
        a(f"""s_mul_i32 s{S_T0}, s{S_C}, 12
s_lshl_b32 s{S_T1}, s{S_W}, 1
s_add_u32 s{S_T0}, s{S_T0}, s{S_T1}
s_lshl_b32 s{S_T0}, s{S_T0}, 10
s_add_u32 s{S_T0}, s{S_T0}, {WS_HOP2:#x}
v_lshlrev_b32 v7, 4, v1
v_add_u32 v7, s{S_T0}, v7
s_lshl_b32 s{S_T0}, s{S_C}, 8
s_add_u32 s{S_T0}, s{S_T0}, {WS_ML:#x}
v_min_u32 v8, 11, v1
v_lshlrev_b32 v8, 4, v8
v_add_u32 v8, s{S_T0}, v8
s_mov_b32 s{S_CNT}, 0""")
        loop = a.newlabel("Lg2")
        a(f"""{loop}:
buffer_load_dwordx4 v[{G+8}:{G+11}], v8, s[{SRD_WS}:{SRD_WS+3}], 0 offen sc1
buffer_load_dwordx4 v[{G}:{G+3}], v7, s[{SRD_WS}:{SRD_WS+3}], 0 offen sc1
buffer_load_dwordx4 v[{G+4}:{G+7}], v7, s[{SRD_WS}:{SRD_WS+3}], 0 offen offset:1024 sc1
s_waitcnt vmcnt(0)""")
        self.chk(6, [G + i for i in range(12)], 14)
        self.retry_if_bad(6, loop)
        self.stamp(5)
        M0, L0, M1, L1 = G + 8, G + 9, G + 10, G + 11
        T = G + 12
        for (m, t) in ((M0, T), (M1, T + 1)):
            a(f"v_mov_b32 v{t}, v{m}")
        for sh in (8, 4, 2, 1):
            for t in (T, T + 1): a(f"v_max_f32_dpp v{t}, v{t}, v{t} row_ror:{sh} row_mask:0xf bank_mask:0xf")
        a(f"v_readlane_b32 s{S_T0}, v{T}, 0\nv_readlane_b32 s{S_T1}, v{T+1}, 0")
        a(f"""s_mov_b32 s{S_T2}, {f2u(1.4426950408889634):#x}
v_subrev_f32 v{T}, s{S_T0}, v{M0}
v_subrev_f32 v{T+1}, s{S_T1}, v{M1}
v_mul_f32 v{T}, s{S_T2}, v{T}
v_mul_f32 v{T+1}, s{S_T2}, v{T+1}
v_exp_f32 v{T}, v{T}
v_exp_f32 v{T+1}, v{T+1}
v_cmp_gt_u32 vcc, 12, v1
v_cndmask_b32 v{T}, 0, v{T}, vcc
v_cndmask_b32 v{T+1}, 0, v{T+1}, vcc
v_mul_f32 v{T+2}, v{T}, v{L0}
v_mul_f32 v{T+3}, v{T+1}, v{L1}""")
        for sh in (8, 4, 2, 1):
            for t in (T + 2, T + 3): a(f"v_add_f32_dpp v{t}, v{t}, v{t} row_ror:{sh} row_mask:0xf bank_mask:0xf")
        a(f"v_rcp_f32 v{T+2}, v{T+2}\nv_rcp_f32 v{T+3}, v{T+3}")
        a(f"v_mul_f32 v{T}, v{T}, v{T+2}\nv_mul_f32 v{T+1}, v{T+1}, v{T+3}")
        a(f"""s_lshl_b32 s{S_T0}, s{S_W}, 1
s_add_u32 s{S_T1}, s{S_T0}, 1
s_nop 3
v_readlane_b32 s{S_T2}, v{T}, s{S_T0}
v_readlane_b32 s{S_T3}, v{T+1}, s{S_T0}
v_readlane_b32 s{S_X}, v{T}, s{S_T1}
v_readlane_b32 s{S_X+1}, v{T+1}, s{S_T1}
v_bfe_u32 v6, v1, 3, 1
v_cmp_eq_u32 vcc, 1, v6
v_mov_b32 v{T+4}, s{S_T2}
v_mov_b32 v{T+5}, s{S_T3}
v_mov_b32 v{T+6}, s{S_X}
v_mov_b32 v{T+7}, s{S_X+1}
v_cndmask_b32 v{T+4}, v{T+4}, v{T+5}, vcc
v_cndmask_b32 v{T+6}, v{T+6}, v{T+7}, vcc""")
        for r in range(4):
            a(f"v_mul_f32 v{G+r}, v{G+r}, v{T+4}\nv_fmac_f32 v{G+r}, v{G+4+r}, v{T+6}")
        a(f"""v_lshlrev_b32 v6, 4, v0
ds_write_b128 v6, v[{G}:{G+3}] offset:{L_ORED}
{sk}:
s_waitcnt lgkmcnt(0)
s_barrier""")
        sk = a.newlabel("Lo")
        a(f"s_cmp_lg_u32 s{S_W}, 0\ns_cbranch_scc1 {sk}")
        a(f"v_lshlrev_b32 v6, 4, v1")
        for w in range(6): a(f"ds_read_b128 v[{G+4*w}:{G+4*w+3}], v6 offset:{L_ORED+1024*w}")
        a("s_waitcnt lgkmcnt(0)")
        for w in range(1, 6):
            a(f"v_pk_add_f32 v[{G}:{G+1}], v[{G}:{G+1}], v[{G+4*w}:{G+4*w+1}]\nv_pk_add_f32 v[{G+2}:{G+3}], v[{G+2}:{G+3}], v[{G+4*w+2}:{G+4*w+3}]")
        for r in range(4): a(f"v_cvt_pk_bf16_f32 v{G+r}, v{G+r}, v{G+r}")
        a(f"""v_and_b32 v6, 7, v1
v_mul_u32_u24 v6, {XQS*4}, v6
v_bfe_u32 v7, v1, 4, 1
v_mul_u32_u24 v7, 192, v7
v_bfe_u32 v8, v1, 3, 1
v_lshlrev_b32 v8, 3, v8
v_bfe_u32 v9, v1, 5, 1
v_lshlrev_b32 v9, 2, v9
v_add3_u32 v6, v6, v7, v8
v_add_u32 v6, v6, v9""")
        for r in range(4): a(f"ds_write_b32 v6, v{G+r} offset:{L_XQ2 + 48*r}")
        a(f"{sk}:\ns_waitcnt lgkmcnt(0)\ns_barrier")
        self.xq_read(XR, L_XQ2, 1)
        a("s_waitcnt vmcnt(0) lgkmcnt(0)")
        for b in range(3):
            self.g64_steps(ACC, T3 + 16 * b, [XR + i for i in range(4)], 4, BT)
            self.half_add(ACC, BT)
            self.red_write(ACC, b)
        a("s_waitcnt lgkmcnt(0)\ns_barrier")
        sk = a.newlabel("Lap")
        a(f"s_cmp_lg_u32 s{S_W}, 0\ns_cbranch_scc1 {sk}")
        self.red_sum(G, 3)
        self.tagw([G, G + 1, G + 2, G + 3], 14)
        a(f"""s_mul_i32 s{S_T0}, s{S_C}, 2304
s_mul_i32 s{S_T1}, s{S_M}, 768
s_add_u32 s{S_T0}, s{S_T0}, s{S_T1}
s_add_u32 s{S_T0}, s{S_T0}, {WS_HOP3:#x}
v_lshlrev_b32 v6, 4, v1
v_add_u32 v6, s{S_T0}, v6
s_mov_b32 exec_lo, 0xffffffff
s_mov_b32 exec_hi, 0xffff
buffer_store_dwordx4 v[{G}:{G+3}], v6, s[{SRD_WS}:{SRD_WS+3}], 0 offen sc1
s_mov_b64 exec, -1
{sk}:""")
        self.stamp(6)

    def S_reduce(self, VX, G):
        a = self.a
        SID = S_G
        G = 16; X1 = 112; T = 116; GB = 120
        sk = a.newlabel("Lrx")
        a(f"s_cmp_ge_u32 s{S_W}, 3\ns_cbranch_scc1 {sk}")
        self.x1_gather(VX, G, X1, T, [0, 27])
        a(f"v_lshlrev_b32 v6, 5, v0\nds_write_b128 v6, v[{X1}:{X1+3}] offset:{L_ORED}\nds_write_b128 v6, v[{G+68}:{G+71}] offset:{L_ORED+16}")
        a(f"s_mov_b64 exec, -1\n{sk}:")
        self.stamp(7)
        sk = a.newlabel("Lh4")
        a(f"s_cmp_ge_u32 s{S_W}, 6\ns_cbranch_scc1 {sk}")
        a(f"""s_mul_i32 s{S_T0}, s{S_W}, {32*2304}
s_lshl_b32 s{S_T1}, s{SID}, 6
s_add_u32 s{S_T0}, s{S_T0}, s{S_T1}
s_add_u32 s{S_T0}, s{S_T0}, {WS_HOP4:#x}
v_lshrrev_b32 v6, 2, v1
v_mul_u32_u24 v6, 2304, v6
v_and_b32 v7, 3, v1
v_lshlrev_b32 v7, 4, v7
v_add3_u32 v7, v6, v7, s{S_T0}
v_add_u32 v8, {16*2304}, v7
s_mov_b32 s{S_CNT}, 0""")
        loop = a.newlabel("Lg4")
        R = 128
        a(f"""{loop}:
buffer_load_dwordx4 v[{R}:{R+3}], v7, s[{SRD_WS}:{SRD_WS+3}], 0 offen sc1
buffer_load_dwordx4 v[{R+4}:{R+7}], v8, s[{SRD_WS}:{SRD_WS+3}], 0 offen sc1
s_waitcnt vmcnt(0)""")
        self.chk(6, [R + i for i in range(8)], 14)
        self.retry_if_bad(6, loop)
        self.stamp(8)
        a(f"v_pk_add_f32 v[{R}:{R+1}], v[{R}:{R+1}], v[{R+4}:{R+5}]\nv_pk_add_f32 v[{R+2}:{R+3}], v[{R+2}:{R+3}], v[{R+6}:{R+7}]")
        for sh in (4, 8):
            for r in range(4): a(f"v_add_f32_dpp v{R+r}, v{R+r}, v{R+r} row_ror:{sh} row_mask:0xf bank_mask:0xf")
        for r in range(4):
            a(f"v_mov_b32 v{R+4+r}, v{R+r}")
        for r in range(4):
            a(f"v_permlane32_swap_b32 v{R+4+r}, v{R+r}")
        for r in range(4):
            a(f"v_add_f32 v{R+r}, v{R+r}, v{R+4+r}")
        for r in range(4):
            a(f"v_mov_b32 v{R+4+r}, v{R+r}")
        for r in range(4):
            a(f"v_permlane16_swap_b32 v{R+4+r}, v{R+r}")
        for r in range(4):
            a(f"v_add_f32 v{R+r}, v{R+r}, v{R+4+r}")
        a(f"""s_lshl_b32 s{S_T0}, s{S_W}, 6
v_lshlrev_b32 v6, 4, v1
v_add_u32 v6, s{S_T0}, v6
s_mov_b32 exec_lo, 0xf
s_mov_b32 exec_hi, 0x0
ds_write_b128 v6, v[{R}:{R+3}] offset:{L_RED}
s_mov_b64 exec, -1
{sk}:
s_waitcnt lgkmcnt(0)
s_barrier
s_cmp_lg_u32 s{S_W}, 0
s_cbranch_scc1 L_Send""")
        a(f"v_and_b32 v7, 3, v1\nv_lshlrev_b32 v6, 4, v7")
        for w in range(6): a(f"ds_read_b128 v[{R+4*w}:{R+4*w+3}], v6 offset:{L_RED+64*w}")
        a(f"""s_lshl_b32 s{S_T0}, s{SID}, 2
v_add_u32 v8, s{S_T0}, v7
v_lshlrev_b32 v9, 5, v8
ds_read_b128 v[{X1}:{X1+3}], v9 offset:{L_ORED}
ds_read_b128 v[{GB}:{GB+3}], v9 offset:{L_ORED+16}
s_waitcnt lgkmcnt(0)""")
        for w in range(1, 6):
            a(f"v_pk_add_f32 v[{R}:{R+1}], v[{R}:{R+1}], v[{R+4*w}:{R+4*w+1}]\nv_pk_add_f32 v[{R+2}:{R+3}], v[{R+2}:{R+3}], v[{R+4*w+2}:{R+4*w+3}]")
        for r in range(4): self.rne(R + r, R + r)
        for r in range(4): a(f"v_mul_f32 v{R+r}, v{GB+r}, v{R+r}")
        for r in range(4): self.rne(R + r, R + r)
        for r in range(4): a(f"v_add_f32 v{R+r}, v{X1+r}, v{R+r}")
        for r in range(4): a(f"v_cvt_pk_bf16_f32 v{R+r}, v{R+r}, v{R+r}")
        a(f"""v_lshrrev_b32 v6, 4, v8
v_lshlrev_b32 v6, 7, v6
v_bfe_u32 v7, v8, 3, 1
v_lshlrev_b32 v7, 6, v7
v_and_b32 v9, 7, v8
v_lshlrev_b32 v9, 1, v9
v_add3_u32 v6, v6, v7, v9""")
        self.srd(SRD_C, P_OUT, 1152)
        a("s_mov_b64 exec, 15")
        for r in range(4): a(f"buffer_store_short v{R+r}, v6, s[{SRD_C}:{SRD_C+3}], 0 offen offset:{16*r}")
        a(f"""s_cmp_lg_u32 s{SID}, 0
s_cbranch_scc1 L_Send
s_add_u32 s{S_T0}, s{S_E}, 1
v_mov_b32 v6, s{S_T0}
v_mov_b32 v7, {WS_EPOCH}
s_mov_b64 exec, 1
buffer_store_dword v6, v7, s[{SRD_WS}:{SRD_WS+3}], 0 offen""")

    def build(self):
        a = self.a
        self.VMA, self.VWQ, self.VWO, self.VMR = 240, 241, 242, 243
        self.prologue()
        self.F()
        self.S()
        a("L_end:\ns_endpgm")
        body, nn = a.text()
        name = KN + "_kernel"
        s = HDR + f"; @launch grid=(256,1,1) block=(512,1,1) lds={LDS_BYTES}\n"
        s += '.amdgcn_target "amdgcn-amd-amdhsa--gfx950"\n.text\n' + f".globl {name}\n.p2align 8\n.type {name},@function\n{name}:\n" + body
        s += f""".section .rodata,"a"
.p2align 6
.amdhsa_kernel {name}
  .amdhsa_next_free_vgpr 256
  .amdhsa_next_free_sgpr 102
  .amdhsa_accum_offset 256
  .amdhsa_group_segment_fixed_size 0
  .amdhsa_kernarg_size 112
  .amdhsa_user_sgpr_count 2
  .amdhsa_user_sgpr_kernarg_segment_ptr 1
  .amdhsa_system_sgpr_workgroup_id_x 1
.end_amdhsa_kernel
"""
        return s, nn

if __name__ == "__main__":
    import argparse
    ap = argparse.ArgumentParser()
    ap.add_argument("-o", default="cdna_kernels/%s.s" % KN)
    ap.add_argument("--stamps", action="store_true")
    ap.add_argument("--fake-xcc", action="store_true")
    ap.add_argument("--no-nt", action="store_true")
    args = ap.parse_args()
    g = Gen(stamps=args.stamps, fake_xcc=args.fake_xcc, nt=not args.no_nt)
    txt, nn = g.build()
    open(args.o, "w").write(txt)
    print("wrote", args.o, "lines", txt.count("\n"), "hazard nops", nn)
```

```python
import sys, struct
sys.path.insert(0, "work")
from asmlib import Asm
KN = "adaLN_cond__sliding_block_cached__geglu_ffn__decode"
HDR = open("cdna_kernels/%s.s.ref" % KN).read().split("; Override")[0]

def f2u(x): return struct.unpack("<I", struct.pack("<f", x))[0]

WS_EPOCH = 0x0
WS_HOP0 = 0x1000
WS_MODR = 0x8000
WS_Q = 0x10000
WS_HOP2 = 0x20000
WS_ML = 0x50000
WS_HOP3 = 0x60000
WS_HOP4 = 0x80000
WS_STAMP = 0x100000
WS_SIZE = 0x200000
L_XQ = 0
L_XQ2 = 3200
L_QL = 6400
L_MX = 6912
L_LS = 6976
L_SLOT = 7040
L_STAT = 7056
L_RED = 7168
L_ORED = 13312
L_W = 21504
LDS_BYTES = 86016
XQS = 100
SPIN = 40000

S_G, S_C, S_W, S_TAG, S_E = 3, 4, 5, 6, 7
S_T0, S_T1, S_T2, S_T3 = 8, 9, 10, 11
S_X = 12
S_FF = 14
S_CNT = 15
P_X, P_K, P_V, P_WQ, P_WO, P_BX, P_WG, P_WU = 16, 18, 20, 22, 24, 26, 28, 30
P_WD, P_C, P_WM, P_OUT, P_DBG, P_WS = 32, 34, 36, 38, 40, 42
SRD_WS, SRD_A, SRD_B, SRD_C = 44, 48, 52, 56
S_K1, S_K2 = 60, 61
S_F = 62
S_M = 63
S_Q = 64
S_ST = 96

class Gen:
    def __init__(self, stamps=False, fake_xcc=False, nt=True, dbgstamp=False):
        self.dbgstamp = dbgstamp; stamps = stamps or dbgstamp
        self.a = Asm(); self.stamps = stamps; self.fake_xcc = fake_xcc
        self.nt = " nt" if nt else ""
        self.nstamp = 0
    def srd(self, srd, ptr, size):
        a = self.a
        a(f"s_mov_b32 s{srd}, s{ptr}\ns_mov_b32 s{srd+1}, s{ptr+1}\ns_mov_b32 s{srd+2}, {size:#x}\ns_mov_b32 s{srd+3}, 0x00020000")
    def rne(self, d, s):
        self.a(f"v_cvt_pk_bf16_f32 v{d}, v{s}, v{s}\nv_and_b32 v{d}, 0xffff0000, v{d}")
    def stamp(self, idx):
        if not self.stamps: return
        a = self.a
        a(f"s_memrealtime s[100:101]\ns_waitcnt lgkmcnt(0)\nv_writelane_b32 v250, s100, {idx}")
    def stamp_flush(self):
        if not self.stamps: return
        a = self.a
        if self.dbgstamp:
            sk = a.newlabel("Ldbg")
            a(f"""s_mov_b64 exec, -1
s_cmp_lg_u32 s{S_W}, 0
s_cbranch_scc1 {sk}
v_readlane_b32 s{S_T0}, v250, 0
s_nop 1
v_subrev_u32 v251, s{S_T0}, v250""")
            for wg, base, idxs in ((0, 9, (1, 2, 5, 7, 8, 10, 11)), (192, 2, (2, 3, 4, 5, 6, 11))):
                nx = a.newlabel("Ldbg")
                a(f"s_cmp_lg_u32 s2, {wg}\ns_cbranch_scc1 {nx}")
                for j, ix in enumerate(idxs):
                    a(f"v_readlane_b32 s{S_T0}, v251, {ix}\ns_nop 1\nv_mov_b32 v252, s{S_T0}\nv_mov_b32 v253, {4*(base+j)}\ns_mov_b64 exec, 1\nglobal_store_dword v253, v252, s[{P_DBG}:{P_DBG+1}]\ns_mov_b64 exec, -1")
                a(f"{nx}:")
            a(f"{sk}:")
            return
        a(f"""s_mov_b64 exec, -1
s_lshl_b32 s{S_T0}, s2, 3
s_add_u32 s{S_T0}, s{S_T0}, s{S_W}
s_lshl_b32 s{S_T0}, s{S_T0}, 8
s_add_u32 s{S_T0}, s{S_T0}, {WS_STAMP}
v_lshlrev_b32 v251, 2, v1
v_add_u32 v251, s{S_T0}, v251
buffer_store_dword v250, v251, s[{SRD_WS}:{SRD_WS+3}], 0 offen""")
    def wave_sum2(self, x, y):
        a = self.a
        for sh in ("row_shr:1 row_mask:0xf", "row_shr:2 row_mask:0xf", "row_shr:4 row_mask:0xf", "row_shr:8 row_mask:0xf", "row_bcast:15 row_mask:0xa", "row_bcast:31 row_mask:0xc"):
            a(f"v_add_f32_dpp v{x}, v{x}, v{x} {sh} bank_mask:0xf")
            a(f"v_add_f32_dpp v{y}, v{y}, v{y} {sh} bank_mask:0xf")
    def g64_steps(self, acc, A, X, n, Bt, first=True, waits=None):
        a = self.a
        def mk(i):
            b = Bt + 4 * (i & 1)
            for r in range(4): a(f"v_and_b32 v{b+r}, v{X[i]}, v{2+r}")
        mk(0)
        for i in range(n):
            if i + 1 < n: mk(i + 1)
            if waits and waits[i] is not None: a(f"s_waitcnt vmcnt({waits[i]})")
            b = Bt + 4 * (i & 1)
            c = "0" if (first and i == 0) else f"v[{acc}:{acc+3}]"
            a(f"v_mfma_f32_16x16x32_bf16 v[{acc}:{acc+3}], v[{A+4*i}:{A+4*i+3}], v[{b}:{b+3}], {c}")
    def half_add(self, acc, T):
        a = self.a
        for r in range(4): a(f"v_mov_b32 v{T+r}, v{acc+r}")
        for r in range(4): a(f"v_permlane32_swap_b32 v{T+r}, v{acc+r}")
        for r in range(4): a(f"v_add_f32_dpp v{acc+r}, v{acc+r}, v{T+r} row_ror:8 row_mask:0xf bank_mask:0xf")
    def tagw(self, regs, vtag):
        for r in regs: self.a(f"v_bfi_b32 v{r}, s{S_FF}, v{vtag}, v{r}")
    def chk(self, acc, regs, vtag, first=True):
        for i, r in enumerate(regs):
            if first and i == 0: self.a(f"v_xor_b32 v{acc}, v{r}, v{vtag}")
            else: self.a(f"v_bitop3_b32 v{acc}, v{acc}, v{r}, v{vtag} bitop3:0xf6")
    def retry_if_bad(self, acc, loop, done_label=None):
        a = self.a
        ok = a.newlabel("Lok")
        a(f"""v_and_b32 v{acc}, 0xff, v{acc}
v_cmp_ne_u32 vcc, 0, v{acc}
s_add_u32 s{S_CNT}, s{S_CNT}, 1
s_cbranch_vccz {ok}
s_cmp_lt_u32 s{S_CNT}, {SPIN}
s_cbranch_scc1 {loop}
{ok}:""")
    def ln_stage1(self, X, S1, S2):
        a = self.a
        a(f"""v_add_f32 v{S1}, v{X}, v{X+1}
v_mul_f32 v{S2}, v{X}, v{X}
v_add_f32 v{S1}, v{S1}, v{X+2}
v_fmac_f32 v{S2}, v{X+1}, v{X+1}
v_add_f32 v{S1}, v{S1}, v{X+3}
v_fmac_f32 v{S2}, v{X+2}, v{X+2}
v_fmac_f32 v{S2}, v{X+3}, v{X+3}""")
        self.wave_sum2(S1, S2)
        a(f"""s_lshl_b32 s{S_T0}, s{S_W}, 3
s_add_u32 s{S_T0}, s{S_T0}, {L_STAT}
v_mov_b32 v12, s{S_T0}
s_mov_b32 exec_lo, 0x0
s_mov_b32 exec_hi, 0x80000000
ds_write_b64 v12, v[{S1}:{S1+1}]
s_mov_b64 exec, -1""")
        assert S2 == S1 + 1
    def ln_stage2(self, X, O, T):
        a = self.a
        a(f"""v_mov_b32 v{T}, {L_STAT}
ds_read_b128 v[{T+4}:{T+7}], v{T}
ds_read_b64 v[{T+2}:{T+3}], v{T} offset:16
s_waitcnt lgkmcnt(0)
v_add_f32 v{T}, v{T+4}, v{T+6}
v_add_f32 v{T+1}, v{T+5}, v{T+7}
v_add_f32 v{T}, v{T}, v{T+2}
v_add_f32 v{T+1}, v{T+1}, v{T+3}
v_mul_f32 v{T}, {f2u(1.0/576):#x}, v{T}
v_mul_f32 v{T+1}, {f2u(1.0/576):#x}, v{T+1}
v_fma_f32 v{T+1}, -v{T}, v{T}, v{T+1}
v_max_f32 v{T+1}, 0, v{T+1}""")
        self.rne(T, T); self.rne(T + 1, T + 1)
        a(f"v_add_f32 v{T+1}, {f2u(1e-5):#x}, v{T+1}")
        self.rne(T + 1, T + 1)
        a(f"v_sqrt_f32 v{T+1}, v{T+1}")
        self.rne(T + 1, T + 1)
        a(f"v_rcp_f32 v{T+1}, v{T+1}")
        for r in range(4): a(f"v_sub_f32 v{O+r}, v{X+r}, v{T}")
        for r in range(4): self.rne(O + r, O + r)
        for r in range(4): a(f"v_mul_f32 v{O+r}, v{O+r}, v{T+1}")
        for r in range(4): self.rne(O + r, O + r)
    def modulate(self, LN, CS, SH, O, T):
        a = self.a
        for r in range(4): a(f"v_add_f32 v{T+r}, 1.0, v{CS+r}")
        for r in range(4): self.rne(T + r, T + r)
        for r in range(4): a(f"v_mul_f32 v{T+r}, v{LN+r}, v{T+r}")
        for r in range(4): self.rne(T + r, T + r)
        for r in range(4): a(f"v_add_f32 v{T+r}, v{T+r}, v{SH+r}")
        for r in range(4): a(f"v_cvt_pk_bf16_f32 v{O+r}, v{T+r}, v{T+r}")
    def xq_write(self, base_addr_reg, P):
        for r in range(4): self.a(f"ds_write_b32 v{base_addr_reg}, v{P+r} offset:{r*48}")
    def set_exec(self, m):
        if m == -1 or m == (1 << 64) - 1: self.a("s_mov_b64 exec, -1")
        elif 0 <= m <= 64: self.a(f"s_mov_b64 exec, {m}")
        else: self.a(f"s_mov_b32 exec_lo, {m & 0xffffffff:#x}\ns_mov_b32 exec_hi, {m >> 32:#x}")
    def exec_t144(self):
        a = self.a
        lbl = a.newlabel("Lx")
        a(f"s_mov_b64 exec, -1\ns_cmp_lg_u32 s{S_W}, 2\ns_cbranch_scc1 {lbl}")
        self.set_exec(0xffff)
        a(f"{lbl}:")

    def x1_gather(self, VX, G, A, T, need_mod):
        a = self.a
        loop = a.newlabel("Lg3")
        self.exec_t144()
        a(f"s_mov_b32 s{S_CNT}, 0\n{loop}:")
        for i, mb in enumerate(need_mod):
            a(f"v_add_u32 v{T}, {WS_MODR + mb*256:#x}, v13")
            a(f"buffer_load_dwordx4 v[{G+64+4*i}:{G+67+4*i}], v{T}, s[{SRD_WS}:{SRD_WS+3}], 0 offen sc1")
        for g in range(16):
            a(f"v_add_u32 v{T}, {WS_HOP3 + g*2304:#x}, v13")
            a(f"buffer_load_dwordx4 v[{G+4*g}:{G+4*g+3}], v{T}, s[{SRD_WS}:{SRD_WS+3}], 0 offen sc1")
        a("s_waitcnt vmcnt(0)")
        n = 64 + 4 * len(need_mod)
        self.chk(T, [G + i for i in range(n)], 14)
        self.retry_if_bad(T, loop)
        for g in range(1, 16):
            a(f"v_pk_add_f32 v[{G}:{G+1}], v[{G}:{G+1}], v[{G+4*g}:{G+4*g+1}]")
            a(f"v_pk_add_f32 v[{G+2}:{G+3}], v[{G+2}:{G+3}], v[{G+4*g+2}:{G+4*g+3}]")
        for i in range(4 * len(need_mod)): a(f"v_and_b32 v{G+64+i}, 0xffff0000, v{G+64+i}")
        for r in range(4): self.rne(G + r, G + r)
        for r in range(4): a(f"v_mul_f32 v{G+r}, v{G+64+r}, v{G+r}")
        for r in range(4): self.rne(G + r, G + r)
        for r in range(4): a(f"v_add_f32 v{A+r}, v{VX+r}, v{G+r}")
        for r in range(4): self.rne(A + r, A + r)

    def load_vec4_u16(self, dst, ptr_srd, voff):
        for r in range(4):
            self.a(f"buffer_load_ushort v{dst+r}, v{voff}, s[{ptr_srd}:{ptr_srd+3}], 0 offen offset:{r*16}")

    def prologue(self):
        a = self.a
        a(f"""s_cmp_ge_u32 s2, 256
s_cbranch_scc1 L_end
s_load_dwordx16 s[16:31], s[0:1], 0
s_load_dwordx8 s[32:39], s[0:1], 64
s_load_dwordx4 s[40:43], s[0:1], 96""")
        if self.stamps: a("v_mov_b32 v250, 0")
        self.stamp(0)
        a(f"""v_and_b32 v1, 63, v0
v_lshrrev_b32 v6, 6, v0
s_nop 0
v_readfirstlane_b32 s{S_W}, v6
s_mov_b32 s{S_FF}, 0xff
v_and_b32 v6, 1, v1
v_mov_b32 v7, 0xffff0000
v_mov_b32 v8, 0xffff
v_cmp_eq_u32 vcc, 1, v6
v_cndmask_b32 v9, v8, v7, vcc
v_bfe_u32 v6, v1, 1, 2""")
        for r in range(4):
            a(f"v_cmp_eq_u32 vcc, {r}, v6\nv_cndmask_b32 v{2+r}, 0, v9, vcc")
        a(f"""v_lshlrev_b32 v13, 4, v0
v_and_b32 v6, 7, v0
v_bfe_u32 v7, v0, 3, 1
v_lshrrev_b32 v8, 4, v0
v_mul_u32_u24 v15, {XQS*4}, v6
v_mul_u32_u24 v9, 192, v7
v_lshlrev_b32 v10, 2, v8
v_add3_u32 v15, v15, v9, v10
v_lshlrev_b32 v11, 7, v8
v_lshlrev_b32 v9, 6, v7
v_lshlrev_b32 v10, 1, v6
v_add3_u32 v11, v11, v9, v10
s_waitcnt lgkmcnt(0)
s_load_dword s{S_E}, s[{P_WS}:{P_WS+1}], {WS_EPOCH}""")
        self.srd(SRD_WS, P_WS, WS_SIZE)
        a("s_cmp_ge_u32 s2, 192\ns_cbranch_scc1 L_S")
    def get_tag(self):
        a = self.a
        a(f"""s_waitcnt lgkmcnt(0)
s_add_u32 s{S_TAG}, s{S_E}, 1
s_and_b32 s{S_TAG}, s{S_TAG}, 0xff
v_mov_b32 v14, s{S_TAG}""")

    def F(self):
        a = self.a; nt = self.nt
        K, V, Q, GU, DN, SC, OA = 16, 64, 112, 128, 164, 188, 200
        VX = 204
        a(f"""s_mul_i32 s{S_G}, s2, 43691
s_lshr_b32 s{S_G}, s{S_G}, 19
s_mul_i32 s{S_T0}, s{S_G}, 12
s_sub_u32 s{S_C}, s2, s{S_T0}
s_mul_i32 s{S_T0}, s{S_C}, 21846
s_lshr_b32 s{S_T0}, s{S_T0}, 16
s_mul_i32 s{S_T1}, s{S_T0}, 3
s_sub_u32 s{S_T1}, s{S_C}, s{S_T1}
s_lshl_b32 s{S_T0}, s{S_T0}, 6
s_cmp_eq_u32 s{S_T1}, 0
s_cselect_b32 s{S_T2}, 6, 5
s_cmp_eq_u32 s{S_T1}, 1
s_cselect_b32 s{S_T3}, 22, 0
s_add_u32 s{S_T0}, s{S_T0}, s{S_T3}
s_cmp_eq_u32 s{S_T1}, 2
s_cselect_b32 s{S_T3}, 43, 0
s_add_u32 s{S_T0}, s{S_T0}, s{S_T3}
s_mul_i32 s{S_T3}, s{S_W}, 3
s_add_u32 s{S_T1}, s{S_T2}, s{S_W}
s_add_u32 s{S_T1}, s{S_T1}, s{S_W}
s_cmp_lt_u32 s{S_W}, s{S_T2}
s_cselect_b32 s{S_T3}, s{S_T3}, s{S_T1}
s_cselect_b32 s{S_M}, 3, 2
s_add_u32 s{S_T0}, s{S_T0}, s{S_T3}
s_lshl_b32 s{S_T0}, s{S_T0}, 12
s_lshl_b32 s{S_T1}, s{S_G}, 24
s_add_u32 s{S_T0}, s{S_T0}, s{S_T1}
s_add_u32 s{S_T0}, s{S_T0}, {61440*256}""")
        self.srd(SRD_A, P_K, 1 << 28); self.srd(SRD_B, P_V, 1 << 28)
        a(f"""s_mov_b32 s{S_K1}, 4096
s_mov_b32 s{S_K2}, 8192
v_and_b32 v6, 15, v1
v_lshrrev_b32 v7, 4, v1
v_lshlrev_b32 v8, 8, v6
v_lshlrev_b32 v9, 4, v7
v_add3_u32 v16, v8, v9, s{S_T0}
v_lshlrev_b32 v8, 4, v6
v_lshlrev_b32 v9, 10, v7
v_add3_u32 v17, v8, v9, s{S_T0}
v_mov_b32 v208, v16
v_mov_b32 v209, v17""")
        VK, VV = 208, 209
        sk = a.newlabel("Lfx")
        a(f"v_mov_b32 v{VX}, 0\nv_mov_b32 v{VX+1}, 0\nv_mov_b32 v{VX+2}, 0\nv_mov_b32 v{VX+3}, 0")
        a(f"s_cmp_ge_u32 s{S_W}, 3\ns_cbranch_scc1 {sk}")
        self.srd(SRD_C, P_X, 1152)
        self.exec_t144()
        self.load_vec4_u16(VX, SRD_C, 11)
        a("s_mov_b64 exec, -1")
        a(f"{sk}:")
        sk = a.newlabel("Lfa")
        a(f"s_cmp_lg_u32 s{S_W}, 0\ns_cbranch_scc1 {sk}")
        if self.fake_xcc:
            a(f"s_and_b32 s{S_F}, s2, 3")
        else:
            a(f"s_getreg_b32 s{S_F}, hwreg(HW_REG_XCC_ID, 0, 4)\ns_and_b32 s{S_F}, s{S_F}, 7")
        a(f"""s_lshl_b32 s{S_T1}, s{S_F}, 5
v_mov_b32 v210, s{S_T1}
v_mov_b32 v211, 1
s_mov_b64 exec, 1
global_atomic_add v211, v210, v211, s[{P_DBG}:{P_DBG+1}] sc0 sc1
s_mov_b64 exec, -1
{sk}:""")
        soff = ["0", f"s{S_K1}", f"s{S_K2}"]
        lab2 = "L_F2"; join = "L_Fjoin"
        a(f"s_cmp_eq_u32 s{S_M}, 2\ns_cbranch_scc1 {lab2}")
        for NG in (3, 2):
            if NG == 2: a(f"{lab2}:")
            self.F_attn(NG, K, V, Q, SC, OA, VK, VV, soff)
            if NG == 3: a(f"s_branch {join}")
        a(f"{join}:")
        self.F_tail(K, GU, DN, OA, VX)

    def F_attn(self, NG, K, V, Q, SC, OA, VK, VV, soff):
        a = self.a; nt = self.nt
        for gi in range(NG):
            for s in range(4):
                a(f"buffer_load_dwordx4 v[{K+16*gi+4*s}:{K+16*gi+4*s+3}], v{VK}, s[{SRD_A}:{SRD_A+3}], {soff[gi]} offen offset:{64*s}{nt}")
        for gi in range(NG):
            for r in range(4):
                a(f"buffer_load_dwordx4 v[{V+16*gi+4*r}:{V+16*gi+4*r+3}], v{VV}, s[{SRD_B}:{SRD_B+3}], {soff[gi]} offen offset:{256*r}{nt}")
        self.stamp(1)
        self.get_tag()
        sk = a.newlabel("Lsl")
        a(f"s_cmp_lg_u32 s{S_W}, 0\ns_cbranch_scc1 {sk}")
        a(f"s_waitcnt vmcnt({8*NG})\nv_readfirstlane_b32 s{S_T0}, v211")
        okl = a.newlabel("Lslok"); lp = a.newlabel("Lsllp"); lp2 = a.newlabel("Lsl2"); fin = a.newlabel("Lslf")
        a(f"""s_cmp_lt_u32 s{S_T0}, 24
s_cbranch_scc1 {okl}""")
        a(f"""v_mov_b32 v210, 4
v_mov_b32 v211, 1
s_mov_b64 exec, 1
global_atomic_add v211, v210, v211, s[{P_DBG}:{P_DBG+1}] sc0 sc1
s_mov_b32 exec_lo, 0xff
s_mov_b32 exec_hi, 0x0
v_lshlrev_b32 v210, 5, v1
s_waitcnt vmcnt(0)
v_readfirstlane_b32 s{S_T1}, v211
s_mov_b32 s{S_CNT}, 0
{lp}:
global_load_dword v212, v210, s[{P_DBG}:{P_DBG+1}] sc1
s_waitcnt vmcnt(0)
s_mov_b32 s{S_T2}, 0""")
        for x in range(8):
            a(f"v_readlane_b32 s{S_T3}, v212, {x}\ns_add_u32 s{S_T2}, s{S_T2}, s{S_T3}")
        a(f"""s_add_u32 s{S_CNT}, s{S_CNT}, 1
s_cmp_ge_u32 s{S_T2}, 192
s_cbranch_scc1 {lp2}
s_cmp_lt_u32 s{S_CNT}, {SPIN}
s_cbranch_scc1 {lp}
{lp2}:
s_mov_b32 s{S_F}, 0""")
        for x in range(8):
            nx = a.newlabel("Lnx")
            a(f"""v_readlane_b32 s{S_T3}, v212, {x}
s_min_u32 s{S_T3}, s{S_T3}, 24
s_sub_u32 s{S_T2}, 24, s{S_T3}
s_cmp_ge_u32 s{S_T1}, s{S_T2}
s_cbranch_scc1 {nx}
s_add_u32 s{S_F}, s{S_T3}, s{S_T1}
s_add_u32 s{S_F}, s{S_F}, {24*x}
s_branch {fin}
{nx}:
s_sub_u32 s{S_T1}, s{S_T1}, s{S_T2}""")
        a(f"""s_branch {fin}
{okl}:
s_mul_i32 s{S_F}, s{S_F}, 24
s_add_u32 s{S_F}, s{S_F}, s{S_T0}
{fin}:
s_mov_b64 exec, -1
s_min_u32 s{S_F}, s{S_F}, 191
v_mov_b32 v210, {L_SLOT}
v_mov_b32 v211, s{S_F}
ds_write_b32 v210, v211
{sk}:""")
        a(f"""s_lshl_b32 s{S_T0}, s{S_G}, 10
s_lshl_b32 s{S_T1}, s{S_W}, 7
s_add_u32 s{S_T0}, s{S_T0}, s{S_T1}
s_add_u32 s{S_T0}, s{S_T0}, {WS_Q:#x}
s_add_u32 s{S_X}, s{P_WS}, s{S_T0}
s_addc_u32 s{S_X+1}, s{P_WS+1}, 0
s_mov_b32 s{S_CNT}, 0
v_and_b32 v6, 3, v1
v_lshrrev_b32 v7, 2, v1
v_lshlrev_b32 v6, 4, v6
v_lshlrev_b32 v7, 1, v7
s_lshl_b32 s{S_T1}, s{S_W}, 6
s_add_u32 s{S_T1}, s{S_T1}, {L_QL}
v_add3_u32 v8, v6, v7, s{S_T1}""")
        lp = a.newlabel("Lq"); okq = a.newlabel("Lqok"); rt = a.newlabel("Lqr")
        a(f"""{lp}:
s_load_dwordx16 s[{S_Q}:{S_Q+15}], s[{S_X}:{S_X+1}], 0 glc
s_load_dwordx16 s[{S_Q+16}:{S_Q+31}], s[{S_X}:{S_X+1}], 64 glc
s_add_u32 s{S_CNT}, s{S_CNT}, 1
s_waitcnt lgkmcnt(0)
s_xor_b32 s{S_T0}, s{S_Q}, s{S_TAG}
s_xor_b32 s{S_T1}, s{S_Q+31}, s{S_TAG}
s_or_b32 s{S_T0}, s{S_T0}, s{S_T1}
s_and_b32 s{S_T0}, s{S_T0}, 0xff
s_cmp_lg_u32 s{S_T0}, 0
s_cbranch_scc1 {rt}""")
        for i in range(32): a(f"v_writelane_b32 v6, s{S_Q+i}, {i}")
        a(f"""s_mov_b32 exec_lo, 0xffffffff
s_mov_b32 exec_hi, 0x0
v_xor_b32 v7, v6, v14
v_and_b32 v7, 0xff, v7
v_cmp_ne_u32 vcc, 0, v7
s_mov_b64 exec, -1
s_cbranch_vccz {okq}
{rt}:
s_cmp_lt_u32 s{S_CNT}, {SPIN}
s_cbranch_scc1 {lp}
{okq}:
s_mov_b32 exec_lo, 0xffffffff
s_mov_b32 exec_hi, 0x0
ds_write_b16_d16_hi v8, v6
s_mov_b64 exec, -1
s_waitcnt lgkmcnt(0)
s_barrier""")
        self.stamp(2)
        a(f"""v_bfe_u32 v6, v1, 3, 1
v_lshrrev_b32 v7, 4, v1
v_lshlrev_b32 v6, 8, v6
v_lshlrev_b32 v7, 4, v7
v_add3_u32 v8, v6, v7, {0}
v_add_u32 v8, {L_QL}, v8
v_mov_b32 v9, {L_SLOT}""".replace("v_add3_u32 v8, v6, v7, 0", "v_add_u32 v8, v6, v7"))
        for s in range(4): a(f"ds_read_b128 v[{Q+4*s}:{Q+4*s+3}], v8 offset:{64*s}")
        a(f"ds_read_b32 v9, v9\ns_waitcnt lgkmcnt(0)\nv_readfirstlane_b32 s{S_F}, v9")
        for gi in range(NG):
            a(f"s_waitcnt vmcnt({4*NG + 4*(NG-1-gi)})")
            for s in range(4):
                c = "0" if s == 0 else f"v[{SC+4*gi}:{SC+4*gi+3}]"
                a(f"v_mfma_f32_16x16x32_bf16 v[{SC+4*gi}:{SC+4*gi+3}], v[{K+16*gi+4*s}:{K+16*gi+4*s+3}], v[{Q+4*s}:{Q+4*s+3}], {c}")
        self.stamp(3)
        a(f"s_mov_b32 s{S_T0}, 0x3db504f3")
        n = 4 * NG
        for p in range(0, n, 2):
            x, y = SC + p, SC + p + 1
            a(f"""v_cvt_pk_bf16_f32 v6, v{x}, v{y}
v_lshlrev_b32 v{x}, 16, v6
v_and_b32 v{y}, 0xffff0000, v6
v_mul_f32 v{x}, s{S_T0}, v{x}
v_mul_f32 v{y}, s{S_T0}, v{y}
v_cvt_pk_bf16_f32 v7, v{x}, v{y}
v_lshlrev_b32 v{x}, 16, v7
v_and_b32 v{y}, 0xffff0000, v7""")
        a(f"v_max3_f32 v6, v{SC}, v{SC+1}, v{SC+2}")
        i = 3
        while i < n:
            if i + 1 < n: a(f"v_max3_f32 v6, v6, v{SC+i}, v{SC+i+1}"); i += 2
            else: a(f"v_max_f32 v6, v6, v{SC+i}"); i += 1
        a(f"""v_mov_b32 v7, v6
v_permlane32_swap_b32 v7, v6
v_max_f32 v6, v6, v7
v_mov_b32 v7, v6
v_permlane16_swap_b32 v7, v6
v_max_f32 v6, v6, v7
v_bfe_u32 v8, v1, 3, 1
v_lshlrev_b32 v8, 5, v8
s_lshl_b32 s{S_T1}, s{S_W}, 2
s_add_u32 s{S_T1}, s{S_T1}, {L_MX}
v_add_u32 v9, s{S_T1}, v8
s_mov_b32 exec_lo, 0x101
s_mov_b32 exec_hi, 0x0
ds_write_b32 v9, v6
s_mov_b64 exec, -1
s_waitcnt lgkmcnt(0)
s_barrier
v_add_u32 v9, {L_MX}, v8
ds_read_b128 v[{Q}:{Q+3}], v9
ds_read_b128 v[{Q+4}:{Q+7}], v9 offset:16
s_waitcnt lgkmcnt(0)
v_max3_f32 v6, v{Q}, v{Q+1}, v{Q+2}
v_max3_f32 v6, v6, v{Q+3}, v{Q+4}
v_max3_f32 v6, v6, v{Q+5}, v{Q+6}
v_max_f32 v6, v6, v{Q+7}
s_mov_b32 s{S_T0}, {f2u(1.4426950408889634):#x}
v_mul_f32 v7, s{S_T0}, v6
v_mov_b32 v10, 0""")
        for i in range(n): a(f"v_fma_f32 v{SC+i}, v{SC+i}, s{S_T0}, -v7")
        for i in range(n): a(f"v_exp_f32 v{SC+i}, v{SC+i}")
        for i in range(n): a(f"v_add_f32 v10, v10, v{SC+i}")
        for i in range(n): a(f"v_cvt_pk_bf16_f32 v{SC+i}, v{SC+i}, v{SC+i}")
        self.stamp(4)
        waits = []
        for gi in range(NG):
            for r in range(4): waits.append(4 * (NG - 1 - gi) if r == 0 else None)
        self.g64_steps(OA, V, [SC + i for i in range(n)], n, Q + 8, first=True, waits=waits)
        a(f"""v_mov_b32 v7, v10
v_permlane32_swap_b32 v7, v10
v_add_f32 v10, v10, v7
v_mov_b32 v7, v10
v_permlane16_swap_b32 v7, v10
v_add_f32 v10, v10, v7
s_lshl_b32 s{S_T1}, s{S_W}, 2
s_add_u32 s{S_T1}, s{S_T1}, {L_LS}
v_add_u32 v9, s{S_T1}, v8
s_mov_b32 exec_lo, 0x101
s_mov_b32 exec_hi, 0x0
ds_write_b32 v9, v10
s_mov_b64 exec, -1
v_lshlrev_b32 v9, 4, v0
v_add_u32 v9, {L_ORED}, v9
ds_write_b128 v9, v[{OA}:{OA+3}]""")
        self.stamp(5)

    def F_gu_loads(self, GU):
        a = self.a; nt = self.nt
        a(f"""v_and_b32 v6, 7, v1
v_and_b32 v7, 3, v1
v_min_u32 v7, 2, v7
v_lshlrev_b32 v7, 4, v7
v_lshrrev_b32 v8, 3, v1
s_lshl_b32 s{S_T0}, s{S_W}, 3
v_add_u32 v8, s{S_T0}, v8
v_mul_u32_u24 v8, 9216, v8
s_mul_i32 s{S_T0}, s{S_F}, 48
v_add3_u32 v7, v7, v8, s{S_T0}
v_mov_b32 v8, s{P_WG}
v_mov_b32 v9, s{P_WG+1}
v_mov_b32 v10, s{P_WU}
v_mov_b32 v12, s{P_WU+1}
v_cmp_lt_u32 vcc, 3, v6
v_cndmask_b32 v8, v8, v10, vcc
v_cndmask_b32 v9, v9, v12, vcc
v_add_co_u32 v212, vcc, v8, v7
v_addc_co_u32 v213, vcc, 0, v9, vcc
s_mov_b32 s{S_X}, {64*9216}
s_mov_b32 s{S_X+1}, 0""")
        for i in range(9):
            a(f"global_load_dwordx4 v[{GU+4*i}:{GU+4*i+3}], v[212:213], off{nt}")
            if i < 8: a(f"v_lshl_add_u64 v[212:213], v[212:213], 0, s[{S_X}:{S_X+1}]")

    def F_tail(self, K, GU, DN, OA, VX):
        a = self.a; nt = self.nt
        sk = a.newlabel("Lgu")
        a(f"s_cmp_ge_u32 s{S_W}, 4\ns_cbranch_scc1 {sk}")
        self.F_gu_loads(GU)
        a(f"{sk}:\ns_waitcnt lgkmcnt(0)\ns_barrier")
        self.stamp(6)
        sk = a.newlabel("Lgu")
        a(f"s_cmp_lt_u32 s{S_W}, 4\ns_cbranch_scc1 {sk}")
        self.F_gu_loads(GU)
        a(f"{sk}:")
        sk = a.newlabel("Lpub")
        a(f"s_cmp_lg_u32 s{S_W}, 3\ns_cbranch_scc1 {sk}")
        T = K
        a(f"v_lshlrev_b32 v9, 4, v1\nv_add_u32 v8, {L_ORED}, v9")
        for w in range(8): a(f"ds_read_b128 v[{T+4*w}:{T+4*w+3}], v8 offset:{1024*w}")
        a(f"v_mov_b32 v7, {L_MX}")
        for i in range(4): a(f"ds_read_b128 v[{T+32+4*i}:{T+35+4*i}], v7 offset:{16*i}")
        for i in range(4): a(f"ds_read_b128 v[{T+48+4*i}:{T+51+4*i}], v7 offset:{64+16*i}")
        a("s_waitcnt lgkmcnt(0)")
        for w in range(1, 8):
            a(f"v_pk_add_f32 v[{T}:{T+1}], v[{T}:{T+1}], v[{T+4*w}:{T+4*w+1}]")
            a(f"v_pk_add_f32 v[{T+2}:{T+3}], v[{T+2}:{T+3}], v[{T+4*w+2}:{T+4*w+3}]")
        self.tagw([T, T + 1, T + 2, T + 3], 14)
        a(f"""s_mul_i32 s{S_T0}, s{S_G}, 12
s_add_u32 s{S_T0}, s{S_T0}, s{S_C}
s_lshl_b32 s{S_T1}, s{S_T0}, 10
s_add_u32 s{S_T1}, s{S_T1}, {WS_HOP2:#x}
v_add_u32 v9, s{S_T1}, v9
buffer_store_dwordx4 v[{T}:{T+3}], v9, s[{SRD_WS}:{SRD_WS+3}], 0 offen sc1""")
        U = T + 64
        for h in range(2):
            b = T + 32 + 8 * h
            a(f"v_max3_f32 v{U+2*h}, v{b}, v{b+1}, v{b+2}\nv_max3_f32 v{U+2*h}, v{U+2*h}, v{b+3}, v{b+4}\nv_max3_f32 v{U+2*h}, v{U+2*h}, v{b+5}, v{b+6}\nv_max_f32 v{U+2*h}, v{U+2*h}, v{b+7}")
            b = T + 48 + 8 * h
            a(f"v_add_f32 v{U+2*h+1}, v{b}, v{b+1}")
            for i in range(2, 8): a(f"v_add_f32 v{U+2*h+1}, v{U+2*h+1}, v{b+i}")
        self.tagw([U, U + 1, U + 2, U + 3], 14)
        a(f"""s_lshl_b32 s{S_T0}, s{S_G}, 4
s_add_u32 s{S_T0}, s{S_T0}, s{S_C}
s_lshl_b32 s{S_T0}, s{S_T0}, 4
s_add_u32 s{S_T0}, s{S_T0}, {WS_ML:#x}
v_mov_b32 v9, s{S_T0}
s_mov_b64 exec, 1
buffer_store_dwordx4 v[{U}:{U+3}], v9, s[{SRD_WS}:{SRD_WS+3}], 0 offen sc1
s_mov_b64 exec, -1
{sk}:""")
        self.stamp(7)
        self.srd(SRD_C, P_WD, 4608 * 1152)
        a(f"""s_mov_b32 s{S_K1}, 9216
s_mov_b32 s{S_K2}, 18432
v_lshrrev_b32 v6, 3, v1
s_mul_i32 s{S_T0}, s{S_F}, 24
v_add_u32 v6, s{S_T0}, v6
v_mul_u32_u24 v6, 1152, v6
v_and_b32 v7, 7, v1
v_lshlrev_b32 v7, 4, v7
s_lshl_b32 s{S_T0}, s{S_W}, 7
v_add3_u32 v6, v6, v7, s{S_T0}""")
        soff = ["0", f"s{S_K1}", f"s{S_K2}"]
        for s in range(3): a(f"buffer_load_dwordx4 v[{DN+4*s}:{DN+4*s+3}], v6, s[{SRD_C}:{SRD_C+3}], {soff[s]} offen{nt}")
        sk = a.newlabel("Ld8")
        a(f"s_cmp_lg_u32 s{S_W}, 3\ns_cbranch_scc1 {sk}")
        for s in range(3): a(f"buffer_load_dwordx4 v[{DN+12+4*s}:{DN+15+4*s}], v6, s[{SRD_C}:{SRD_C+3}], {soff[s]} offen offset:640{nt}")
        a(f"{sk}:")
        G = K; X1 = 112; T = 96
        sk = a.newlabel("Lx1")
        a(f"v_mov_b32 v{X1}, 0\nv_mov_b32 v{X1+1}, 0\nv_mov_b32 v{X1+2}, 0\nv_mov_b32 v{X1+3}, 0")
        a(f"s_cmp_ge_u32 s{S_W}, 3\ns_cbranch_scc1 {sk}")
        for r in range(4): a(f"v_lshlrev_b32 v{VX+r}, 16, v{VX+r}")
        self.x1_gather(VX, G, X1, T, [0, 18, 9])
        a("s_mov_b64 exec, -1")
        self.stamp(8)
        self.ln_stage1(X1, T, T + 1)
        a(f"{sk}:\ns_waitcnt lgkmcnt(0)\ns_barrier")
        sk = a.newlabel("Lh2")
        a(f"s_cmp_ge_u32 s{S_W}, 3\ns_cbranch_scc1 {sk}")
        self.exec_t144()
        self.ln_stage2(X1, T + 8, T)
        self.modulate(T + 8, G + 68, G + 72, T + 12, T)
        self.xq_write(15, T + 12)
        a(f"s_mov_b64 exec, -1\n{sk}:\ns_waitcnt lgkmcnt(0)\ns_barrier")
        self.stamp(9)
        XR = 16; ACC = 32; BT = 36
        a(f"""v_lshrrev_b32 v6, 3, v1
v_mul_u32_u24 v6, {XQS*4}, v6
s_mul_i32 s{S_T0}, s{S_W}, 48
v_add_u32 v6, s{S_T0}, v6""")
        for i in range(3): a(f"ds_read_b128 v[{XR+4*i}:{XR+4*i+3}], v6 offset:{L_XQ+16*i}")
        a("s_waitcnt vmcnt(0) lgkmcnt(0)")
        self.g64_steps(ACC, GU, [XR + i for i in range(9)], 9, BT)
        self.half_add(ACC, BT)
        self.red_write(ACC, 0)
        a("s_waitcnt lgkmcnt(0)\ns_barrier")
        self.stamp(10)
        sk = a.newlabel("Lact")
        a(f"s_cmp_lg_u32 s{S_W}, 0\ns_cbranch_scc1 {sk}")
        R0 = 40
        self.red_sum(R0, 1)
        for r in range(3): self.rne(R0 + r, R0 + r)
        for r in range(3): a(f"v_mov_b32_dpp v{R0+4+r}, v{R0+r} row_ror:8 row_mask:0xf bank_mask:0xf")
        c1 = f2u(0.044715); c2 = f2u(-2.0 * 0.7978845608028654 * 1.4426950408889634)
        for r in range(3):
            g = R0 + r; t = R0 + 8 + r
            a(f"""v_mul_f32 v{t}, v{g}, v{g}
v_mul_f32 v{t}, {c1:#x}, v{t}
v_fma_f32 v{t}, v{t}, v{g}, v{g}
v_mul_f32 v{t}, {c2:#x}, v{t}
v_exp_f32 v{t}, v{t}
v_add_f32 v{t}, 1.0, v{t}
v_rcp_f32 v{t}, v{t}
v_mul_f32 v{t}, v{g}, v{t}""")
            self.rne(t, t)
            a(f"v_mul_f32 v{t}, v{t}, v{R0+4+r}\nv_cvt_pk_bf16_f32 v{t}, v{t}, v{t}")
        a(f"""v_mul_u32_u24 v6, {XQS*4}, v1
s_mov_b32 exec_lo, 0xff
s_mov_b32 exec_hi, 0""")
        for r in range(3): a(f"ds_write_b32 v6, v{R0+8+r} offset:{L_XQ2 + 48*r}")
        a(f"s_mov_b64 exec, -1\n{sk}:\ns_waitcnt lgkmcnt(0)\ns_barrier")
        a(f"v_lshrrev_b32 v6, 3, v1\nv_mul_u32_u24 v6, {XQS*4}, v6")
        for s in range(3): a(f"ds_read_b32 v{XR+s}, v6 offset:{L_XQ2+48*s}")
        a("s_waitcnt lgkmcnt(0)")
        self.g64_steps(ACC, DN, [XR, XR + 1, XR + 2], 3, BT)
        a(f"""s_mul_i32 s{S_T0}, s{S_F}, 2304
s_add_u32 s{S_T0}, s{S_T0}, {WS_HOP4:#x}
s_lshl_b32 s{S_T1}, s{S_W}, 8
s_add_u32 s{S_T0}, s{S_T0}, s{S_T1}
v_and_b32 v6, 7, v1
v_bfe_u32 v7, v1, 4, 1
v_lshl_add_u32 v6, v7, 3, v6
v_lshlrev_b32 v6, 4, v6
v_add_u32 v6, s{S_T0}, v6""")
        self.half_add(ACC, BT)
        self.tagw([ACC, ACC + 1, ACC + 2, ACC + 3], 14)
        a(f"""s_mov_b32 exec_lo, 0xff00ff
s_mov_b32 exec_hi, 0x0
buffer_store_dwordx4 v[{ACC}:{ACC+3}], v6, s[{SRD_WS}:{SRD_WS+3}], 0 offen sc1
s_mov_b64 exec, -1
s_cmp_lg_u32 s{S_W}, 3
s_cbranch_scc1 L_Fend""")
        A2 = 44
        self.g64_steps(A2, DN + 12, [XR, XR + 1, XR + 2], 3, BT)
        self.half_add(A2, BT)
        self.tagw([A2, A2 + 1, A2 + 2, A2 + 3], 14)
        a(f"""s_mov_b32 exec_lo, 0xff00ff
s_mov_b32 exec_hi, 0x0
buffer_store_dwordx4 v[{A2}:{A2+3}], v6, s[{SRD_WS}:{SRD_WS+3}], 0 offen offset:1280 sc1
s_mov_b64 exec, -1
L_Fend:""")
        self.stamp(11)
        self.stamp_flush()
        a("s_endpgm")

    def red_write(self, ACC, blk):
        a = self.a
        a(f"""v_and_b32 v6, 7, v1
v_bfe_u32 v7, v1, 4, 1
v_lshl_add_u32 v6, v7, 3, v6
v_lshlrev_b32 v6, 4, v6
s_lshl_b32 s{S_T0}, s{S_W}, 8
v_add_u32 v6, s{S_T0}, v6
s_mov_b32 exec_lo, 0xff00ff
s_mov_b32 exec_hi, 0x0
ds_write_b128 v6, v[{ACC}:{ACC+3}] offset:{L_RED + blk*2048}
s_mov_b64 exec, -1""")
    def red_sum(self, R0, nblk):
        a = self.a
        a(f"""v_lshrrev_b32 v6, 4, v1
v_lshlrev_b32 v6, 11, v6
v_and_b32 v7, 15, v1
v_lshl_add_u32 v6, v7, 4, v6""")
        if nblk < 4: a(f"v_min_u32 v6, {(nblk-1)*2048 + 240}, v6")
        for w in range(8): a(f"ds_read_b128 v[{R0+4*w}:{R0+4*w+3}], v6 offset:{L_RED + 256*w}")
        a("s_waitcnt lgkmcnt(0)")
        for w in range(1, 8):
            a(f"v_pk_add_f32 v[{R0}:{R0+1}], v[{R0}:{R0+1}], v[{R0+4*w}:{R0+4*w+1}]")
            a(f"v_pk_add_f32 v[{R0+2}:{R0+3}], v[{R0+2}:{R0+3}], v[{R0+4*w+2}:{R0+4*w+3}]")

    def tile_addr(self, vdst, row_stride, s_off):
        a = self.a
        a(f"""v_lshrrev_b32 v6, 3, v1
s_lshl_b32 s{S_T3}, s{S_W}, 3
v_add_u32 v6, s{S_T3}, v6
v_mul_u32_u24 v6, {row_stride}, v6
v_and_b32 v7, 7, v1
v_lshlrev_b32 v7, 4, v7
v_add3_u32 v{vdst}, v6, v7, s{s_off}""")
    def xq_read(self, XR, base, n=3):
        a = self.a
        a(f"""v_lshrrev_b32 v6, 3, v1
v_mul_u32_u24 v6, {XQS*4}, v6
s_mul_i32 s{S_T0}, s{S_W}, 48
v_add_u32 v6, s{S_T0}, v6""")
        for i in range(n): a(f"ds_read_b128 v[{XR+4*i}:{XR+4*i+3}], v6 offset:{base+16*i}")

    def S(self):
        a = self.a; nt = self.nt
        SID = S_G
        MA, WQ, T3, T4 = 16, 28, 64, 112
        VC, VX, LN = 148, 152, 156
        XR, ACC, BT = 160, 172, 176
        G = 184
        a(f"L_S:\ns_sub_u32 s{SID}, s2, 192")
        self.srd(SRD_A, P_WM, 576 * 6912); self.srd(SRD_B, P_WQ, 576 * 8192)
        for r in range(4): a(f"v_mov_b32 v{VC+r}, 0\nv_mov_b32 v{VX+r}, 0")
        sk = a.newlabel("Lsx")
        a(f"s_cmp_ge_u32 s{S_W}, 3\ns_cbranch_scc1 {sk}")
        self.srd(SRD_C, P_C, 1152)
        self.exec_t144()
        self.load_vec4_u16(VC, SRD_C, 11)
        self.srd(SRD_C, P_X, 1152)
        self.load_vec4_u16(VX, SRD_C, 11)
        a(f"s_mov_b64 exec, -1\n{sk}:")
        a(f"""s_mul_i32 s{S_C}, s{SID}, 3641
s_lshr_b32 s{S_C}, s{S_C}, 16
s_mul_i32 s{S_T0}, s{S_C}, 18
s_sub_u32 s{S_M}, s{SID}, s{S_T0}""")
        nomod = a.newlabel("Lnm")
        a(f"s_cmp_ge_u32 s{SID}, 54\ns_cbranch_scc1 {nomod}")
        a(f"""s_mul_i32 s{S_T0}, s{S_C}, {192*6912}
s_lshl_b32 s{S_T1}, s{S_M}, 7
s_add_u32 s{S_T0}, s{S_T0}, s{S_T1}""")
        self.tile_addr(self.VMA, 6912, S_T0)
        for i in range(3):
            a(f"v_add_u32 v6, {64*i*6912}, v{self.VMA}\nbuffer_load_dwordx4 v[{MA+4*i}:{MA+4*i+3}], v6, s[{SRD_A}:{SRD_A+3}], 0 offen{nt}")
        a(f"{nomod}:\ns_barrier")
        a(f"s_lshl_b32 s{S_T0}, s{SID}, 7")
        self.tile_addr(self.VWQ, 8192, S_T0)
        for i in range(4):
            a(f"v_add_u32 v6, {64*i*8192}, v{self.VWQ}\nbuffer_load_dwordx4 v[{WQ+4*i}:{WQ+4*i+3}], v6, s[{SRD_B}:{SRD_B+3}], 0 offen{nt}")
        self.stamp(1)
        sk = a.newlabel("Lsi")
        a(f"s_cmp_ge_u32 s{S_W}, 3\ns_cbranch_scc1 {sk}")
        w7 = a.newlabel("Lw7"); w8 = a.newlabel("Lw8")
        a(f"s_cmp_ge_u32 s{SID}, 54\ns_cbranch_scc1 {w7}\ns_waitcnt vmcnt(7)\ns_branch {w8}\n{w7}:\ns_waitcnt vmcnt(4)\n{w8}:")
        for r in range(4): a(f"v_lshlrev_b32 v{VC+r}, 16, v{VC+r}\nv_lshlrev_b32 v{VX+r}, 16, v{VX+r}")
        for r in range(4):
            t = BT + r
            a(f"v_mul_f32 v{t}, {f2u(-1.4426950408889634):#x}, v{VC+r}\nv_exp_f32 v{t}, v{t}\nv_add_f32 v{t}, 1.0, v{t}\nv_rcp_f32 v{t}, v{t}\nv_mul_f32 v{t}, v{VC+r}, v{t}\nv_cvt_pk_bf16_f32 v{t}, v{t}, v{t}")
        self.exec_t144()
        self.xq_write(15, BT)
        a("s_mov_b64 exec, -1")
        self.ln_stage1(VX, BT + 4, BT + 5)
        a(f"{sk}:")
        self.get_tag()
        a("s_barrier")
        sk = a.newlabel("Lln")
        a(f"s_cmp_ge_u32 s{S_W}, 3\ns_cbranch_scc1 {sk}")
        self.ln_stage2(VX, LN, BT)
        a(f"{sk}:")
        nomod = a.newlabel("Lnm")
        a(f"s_cmp_ge_u32 s{SID}, 54\ns_cbranch_scc1 {nomod}")
        a(f"""v_lshrrev_b32 v6, 3, v1
v_mul_u32_u24 v6, {XQS*4}, v6
s_mul_i32 s{S_T0}, s{S_W}, 48
s_mul_i32 s{S_T1}, s{S_C}, 12
s_add_u32 s{S_T0}, s{S_T0}, s{S_T1}
v_add_u32 v6, s{S_T0}, v6""")
        for i in range(3): a(f"ds_read_b32 v{XR+i}, v6 offset:{L_XQ+4*i}")
        a("s_waitcnt vmcnt(4) lgkmcnt(0)")
        self.g64_steps(ACC, MA, [XR, XR + 1, XR + 2], 3, BT)
        self.half_add(ACC, BT)
        self.red_write(ACC, 0)
        a(f"{nomod}:\ns_waitcnt lgkmcnt(0)\ns_barrier")
        self.stamp(2)
        sk = a.newlabel("Lmp")
        a(f"s_cmp_ge_u32 s{SID}, 54\ns_cbranch_scc1 {sk}\ns_cmp_lg_u32 s{S_W}, 7\ns_cbranch_scc1 {sk}")
        self.red_sum(G, 1)
        self.tagw([G, G + 1, G + 2, G + 3], 14)
        a(f"""s_mul_i32 s{S_T0}, s{S_C}, 4608
s_lshl_b32 s{S_T1}, s{S_M}, 8
s_add_u32 s{S_T0}, s{S_T0}, s{S_T1}
s_add_u32 s{S_T0}, s{S_T0}, {WS_HOP0:#x}
v_lshlrev_b32 v6, 4, v1
v_add_u32 v6, s{S_T0}, v6
s_mov_b32 exec_lo, 0xffff
s_mov_b32 exec_hi, 0x0
buffer_store_dwordx4 v[{G}:{G+3}], v6, s[{SRD_WS}:{SRD_WS+3}], 0 offen sc1
s_mov_b64 exec, -1
{sk}:""")
        for i in range(4, 9):
            a(f"v_add_u32 v6, {64*i*8192}, v{self.VWQ}\nbuffer_load_dwordx4 v[{WQ+4*i}:{WQ+4*i+3}], v6, s[{SRD_B}:{SRD_B+3}], 0 offen{nt}")
        sk = a.newlabel("Lh0")
        a(f"s_cmp_ge_u32 s{S_W}, 3\ns_cbranch_scc1 {sk}")
        self.exec_t144()
        loop = a.newlabel("Lg0")
        a(f"s_mov_b32 s{S_CNT}, 0\n{loop}:")
        for rs in range(3):
            for part in range(2):
                k = 2 * rs + part
                a(f"v_add_u32 v6, {WS_HOP0 + rs*4608 + part*2304:#x}, v13")
                a(f"buffer_load_dwordx4 v[{G+4*k}:{G+4*k+3}], v6, s[{SRD_WS}:{SRD_WS+3}], 0 offen sc1")
        a("s_waitcnt vmcnt(0)")
        self.chk(6, [G + i for i in range(24)], 14)
        self.retry_if_bad(6, loop)
        for k in (2, 4):
            for h in range(0, 8, 2): a(f"v_pk_add_f32 v[{G+h}:{G+h+1}], v[{G+h}:{G+h+1}], v[{G+4*k+h}:{G+4*k+h+1}]")
        for i in range(8): self.rne(G + i, G + i)
        self.modulate(LN, G + 4, G, BT + 4, BT)
        a(f"v_add_u32 v6, {L_XQ2}, v15")
        self.xq_write(6, BT + 4)
        a(f"s_mov_b64 exec, -1\n{sk}:\ns_waitcnt lgkmcnt(0)\ns_barrier")
        self.stamp(3)
        self.xq_read(XR, L_XQ2)
        a("s_waitcnt vmcnt(0) lgkmcnt(0)")
        self.g64_steps(ACC, WQ, [XR + i for i in range(9)], 9, BT)
        self.half_add(ACC, BT)
        self.red_write(ACC, 0)
        a("s_waitcnt lgkmcnt(0)\ns_barrier")
        sk = a.newlabel("Lqp")
        a(f"s_cmp_lg_u32 s{S_W}, 7\ns_cbranch_scc1 {sk}")
        self.red_sum(G, 1)
        for r in range(4): self.rne(G + r, G + r)
        self.tagw([G, G + 1, G + 2, G + 3], 14)
        a(f"""s_lshl_b32 s{S_T0}, s{SID}, 8
s_add_u32 s{S_T0}, s{S_T0}, {WS_Q:#x}
v_lshlrev_b32 v6, 4, v1
v_add_u32 v6, s{S_T0}, v6
s_mov_b32 exec_lo, 0xffff
s_mov_b32 exec_hi, 0x0
buffer_store_dwordx4 v[{G}:{G+3}], v6, s[{SRD_WS}:{SRD_WS+3}], 0 offen sc1
s_mov_b64 exec, -1
{sk}:""")
        self.stamp(4)
        notwo = "L_Snotwo"
        a(f"s_cmp_ge_u32 s{SID}, 48\ns_cbranch_scc1 {notwo}")
        a(f"""s_mul_i32 s{S_C}, s{SID}, 21846
s_lshr_b32 s{S_C}, s{S_C}, 16
s_mul_i32 s{S_T0}, s{S_C}, 3
s_sub_u32 s{S_M}, s{SID}, s{S_T0}
s_mul_i32 s{S_T0}, s{S_C}, {256*1152}
s_mul_i32 s{S_T1}, s{S_M}, 384
s_add_u32 s{S_T0}, s{S_T0}, s{S_T1}""")
        self.srd(SRD_B, P_WO, 4096 * 1152)
        self.tile_addr(self.VWO, 1152, S_T0)
        a(f"s_mov_b32 s{S_K1}, {64*1152}\ns_mov_b32 s{S_K2}, {128*1152}\ns_mov_b32 s{S_F}, {192*1152}")
        so = ["0", f"s{S_K1}", f"s{S_K2}", f"s{S_F}"]
        for b in range(3):
            for i in range(4):
                a(f"buffer_load_dwordx4 v[{T3+16*b+4*i}:{T3+16*b+4*i+3}], v{self.VWO}, s[{SRD_B}:{SRD_B+3}], {so[i]} offen offset:{128*b}{nt}")
        sk = a.newlabel("Lmr1")
        a(f"s_cmp_ge_u32 s{SID}, 4\ns_cbranch_scc1 {sk}")
        a(f"s_add_u32 s{S_T2}, s{SID}, 32")
        self.modrest_tiles([(T4, S_T2)], XR, ACC, BT, G)
        a(f"{sk}:")
        self.S_wo(T3, XR, ACC, BT, G)
        a("s_branch L_Sred")
        a(f"{notwo}:")
        a(f"s_sub_u32 s{S_T2}, s{SID}, 48\ns_add_u32 s{S_T1}, s{S_T2}, 16")
        a(f"s_mov_b32 s{S_F}, s{S_T1}")
        self.modrest_tiles([(T3, S_T2), (T4, S_F)], XR, ACC, BT, G)
        a("s_branch L_Send")
        a("L_Sred:")
        a(f"s_cmp_ge_u32 s{SID}, 36\ns_cbranch_scc1 L_Send")
        self.S_reduce(VX, G)
        a("L_Send:")
        self.stamp(11)
        self.stamp_flush()
        a("s_endpgm")

    def modrest_tiles(self, tiles, XR, ACC, BT, G):
        a = self.a; nt = self.nt
        for k, (reg, st) in enumerate(tiles):
            a(f"s_lshl_b32 s{S_T0}, s{st}, 7\ns_add_u32 s{S_T0}, s{S_T0}, 2304")
            self.tile_addr(self.VMR, 6912, S_T0)
            for i in range(9):
                a(f"v_add_u32 v6, {64*i*6912}, v{self.VMR}\nbuffer_load_dwordx4 v[{reg+4*i}:{reg+4*i+3}], v6, s[{SRD_A}:{SRD_A+3}], 0 offen{nt}")
        self.xq_read(XR, L_XQ)
        a("s_waitcnt lgkmcnt(0)")
        a("s_barrier")
        for k, (reg, st) in enumerate(tiles):
            a(f"s_waitcnt vmcnt({9*(len(tiles)-1-k)})")
            self.g64_steps(ACC, reg, [XR + i for i in range(9)], 9, BT)
            self.half_add(ACC, BT)
            self.red_write(ACC, k)
        a("s_waitcnt lgkmcnt(0)\ns_barrier")
        sk = a.newlabel("Lmrp")
        a(f"s_cmp_lg_u32 s{S_W}, 7\ns_cbranch_scc1 {sk}")
        self.red_sum(G, len(tiles))
        for r in range(4): self.rne(G + r, G + r)
        self.tagw([G, G + 1, G + 2, G + 3], 14)
        a(f"v_mov_b32 v6, s{tiles[0][1]}")
        if len(tiles) > 1:
            a(f"v_mov_b32 v7, s{tiles[1][1]}\nv_cmp_lt_u32 vcc, 15, v1\nv_cndmask_b32 v6, v6, v7, vcc")
        a(f"""v_lshlrev_b32 v6, 8, v6
v_and_b32 v7, 15, v1
v_lshl_add_u32 v6, v7, 4, v6
v_add_u32 v6, {WS_MODR:#x}, v6
s_mov_b32 exec_lo, {(1 << (16*len(tiles))) - 1:#x}
s_mov_b32 exec_hi, 0
buffer_store_dwordx4 v[{G}:{G+3}], v6, s[{SRD_WS}:{SRD_WS+3}], 0 offen sc1
s_mov_b64 exec, -1
{sk}:""")

    def S_wo(self, T3, XR, ACC, BT, G):
        a = self.a
        sk = a.newlabel("Lh2g")
        a(f"s_cmp_ge_u32 s{S_W}, 6\ns_cbranch_scc1 {sk}")
        a(f"""s_mul_i32 s{S_T0}, s{S_C}, 12
s_lshl_b32 s{S_T1}, s{S_W}, 1
s_add_u32 s{S_T0}, s{S_T0}, s{S_T1}
s_lshl_b32 s{S_T0}, s{S_T0}, 10
s_add_u32 s{S_T0}, s{S_T0}, {WS_HOP2:#x}
v_lshlrev_b32 v7, 4, v1
v_add_u32 v7, s{S_T0}, v7
s_lshl_b32 s{S_T0}, s{S_C}, 8
s_add_u32 s{S_T0}, s{S_T0}, {WS_ML:#x}
v_min_u32 v8, 11, v1
v_lshlrev_b32 v8, 4, v8
v_add_u32 v8, s{S_T0}, v8
s_mov_b32 s{S_CNT}, 0""")
        loop = a.newlabel("Lg2")
        a(f"""{loop}:
buffer_load_dwordx4 v[{G+8}:{G+11}], v8, s[{SRD_WS}:{SRD_WS+3}], 0 offen sc1
buffer_load_dwordx4 v[{G}:{G+3}], v7, s[{SRD_WS}:{SRD_WS+3}], 0 offen sc1
buffer_load_dwordx4 v[{G+4}:{G+7}], v7, s[{SRD_WS}:{SRD_WS+3}], 0 offen offset:1024 sc1
s_waitcnt vmcnt(0)""")
        self.chk(6, [G + i for i in range(12)], 14)
        self.retry_if_bad(6, loop)
        self.stamp(5)
        M0, L0, M1, L1 = G + 8, G + 9, G + 10, G + 11
        T = G + 12
        for (m, t) in ((M0, T), (M1, T + 1)):
            a(f"v_mov_b32 v{t}, v{m}")
        for sh in (8, 4, 2, 1):
            for t in (T, T + 1): a(f"v_max_f32_dpp v{t}, v{t}, v{t} row_ror:{sh} row_mask:0xf bank_mask:0xf")
        a(f"v_readlane_b32 s{S_T0}, v{T}, 0\nv_readlane_b32 s{S_T1}, v{T+1}, 0")
        a(f"""s_mov_b32 s{S_T2}, {f2u(1.4426950408889634):#x}
v_subrev_f32 v{T}, s{S_T0}, v{M0}
v_subrev_f32 v{T+1}, s{S_T1}, v{M1}
v_mul_f32 v{T}, s{S_T2}, v{T}
v_mul_f32 v{T+1}, s{S_T2}, v{T+1}
v_exp_f32 v{T}, v{T}
v_exp_f32 v{T+1}, v{T+1}
v_cmp_gt_u32 vcc, 12, v1
v_cndmask_b32 v{T}, 0, v{T}, vcc
v_cndmask_b32 v{T+1}, 0, v{T+1}, vcc
v_mul_f32 v{T+2}, v{T}, v{L0}
v_mul_f32 v{T+3}, v{T+1}, v{L1}""")
        for sh in (8, 4, 2, 1):
            for t in (T + 2, T + 3): a(f"v_add_f32_dpp v{t}, v{t}, v{t} row_ror:{sh} row_mask:0xf bank_mask:0xf")
        a(f"v_rcp_f32 v{T+2}, v{T+2}\nv_rcp_f32 v{T+3}, v{T+3}")
        a(f"v_mul_f32 v{T}, v{T}, v{T+2}\nv_mul_f32 v{T+1}, v{T+1}, v{T+3}")
        a(f"""s_lshl_b32 s{S_T0}, s{S_W}, 1
s_add_u32 s{S_T1}, s{S_T0}, 1
s_nop 3
v_readlane_b32 s{S_T2}, v{T}, s{S_T0}
v_readlane_b32 s{S_T3}, v{T+1}, s{S_T0}
v_readlane_b32 s{S_X}, v{T}, s{S_T1}
v_readlane_b32 s{S_X+1}, v{T+1}, s{S_T1}
v_bfe_u32 v6, v1, 3, 1
v_cmp_eq_u32 vcc, 1, v6
v_mov_b32 v{T+4}, s{S_T2}
v_mov_b32 v{T+5}, s{S_T3}
v_mov_b32 v{T+6}, s{S_X}
v_mov_b32 v{T+7}, s{S_X+1}
v_cndmask_b32 v{T+4}, v{T+4}, v{T+5}, vcc
v_cndmask_b32 v{T+6}, v{T+6}, v{T+7}, vcc""")
        for r in range(4):
            a(f"v_mul_f32 v{G+r}, v{G+r}, v{T+4}\nv_fmac_f32 v{G+r}, v{G+4+r}, v{T+6}")
        a(f"""v_lshlrev_b32 v6, 4, v0
ds_write_b128 v6, v[{G}:{G+3}] offset:{L_ORED}
{sk}:
s_waitcnt lgkmcnt(0)
s_barrier""")
        sk = a.newlabel("Lo")
        a(f"s_cmp_lg_u32 s{S_W}, 0\ns_cbranch_scc1 {sk}")
        a(f"v_lshlrev_b32 v6, 4, v1")
        for w in range(6): a(f"ds_read_b128 v[{G+4*w}:{G+4*w+3}], v6 offset:{L_ORED+1024*w}")
        a("s_waitcnt lgkmcnt(0)")
        for w in range(1, 6):
            a(f"v_pk_add_f32 v[{G}:{G+1}], v[{G}:{G+1}], v[{G+4*w}:{G+4*w+1}]\nv_pk_add_f32 v[{G+2}:{G+3}], v[{G+2}:{G+3}], v[{G+4*w+2}:{G+4*w+3}]")
        for r in range(4): a(f"v_cvt_pk_bf16_f32 v{G+r}, v{G+r}, v{G+r}")
        a(f"""v_and_b32 v6, 7, v1
v_mul_u32_u24 v6, {XQS*4}, v6
v_bfe_u32 v7, v1, 4, 1
v_mul_u32_u24 v7, 192, v7
v_bfe_u32 v8, v1, 3, 1
v_lshlrev_b32 v8, 3, v8
v_bfe_u32 v9, v1, 5, 1
v_lshlrev_b32 v9, 2, v9
v_add3_u32 v6, v6, v7, v8
v_add_u32 v6, v6, v9""")
        for r in range(4): a(f"ds_write_b32 v6, v{G+r} offset:{L_XQ2 + 48*r}")
        a(f"{sk}:\ns_waitcnt lgkmcnt(0)\ns_barrier")
        self.xq_read(XR, L_XQ2, 1)
        a("s_waitcnt vmcnt(0) lgkmcnt(0)")
        for b in range(3):
            self.g64_steps(ACC, T3 + 16 * b, [XR + i for i in range(4)], 4, BT)
            self.half_add(ACC, BT)
            self.red_write(ACC, b)
        a("s_waitcnt lgkmcnt(0)\ns_barrier")
        sk = a.newlabel("Lap")
        a(f"s_cmp_lg_u32 s{S_W}, 0\ns_cbranch_scc1 {sk}")
        self.red_sum(G, 3)
        self.tagw([G, G + 1, G + 2, G + 3], 14)
        a(f"""s_mul_i32 s{S_T0}, s{S_C}, 2304
s_mul_i32 s{S_T1}, s{S_M}, 768
s_add_u32 s{S_T0}, s{S_T0}, s{S_T1}
s_add_u32 s{S_T0}, s{S_T0}, {WS_HOP3:#x}
v_lshlrev_b32 v6, 4, v1
v_add_u32 v6, s{S_T0}, v6
s_mov_b32 exec_lo, 0xffffffff
s_mov_b32 exec_hi, 0xffff
buffer_store_dwordx4 v[{G}:{G+3}], v6, s[{SRD_WS}:{SRD_WS+3}], 0 offen sc1
s_mov_b64 exec, -1
{sk}:""")
        self.stamp(6)

    def S_reduce(self, VX, G):
        a = self.a
        SID = S_G
        G = 16; X1 = 112; T = 116; GB = 120
        sk = a.newlabel("Lrx")
        a(f"s_cmp_ge_u32 s{S_W}, 3\ns_cbranch_scc1 {sk}")
        self.x1_gather(VX, G, X1, T, [0, 27])
        a(f"v_lshlrev_b32 v6, 5, v0\nds_write_b128 v6, v[{X1}:{X1+3}] offset:{L_ORED}\nds_write_b128 v6, v[{G+68}:{G+71}] offset:{L_ORED+16}")
        a(f"s_mov_b64 exec, -1\n{sk}:")
        self.stamp(7)
        sk = a.newlabel("Lh4")
        a(f"s_cmp_ge_u32 s{S_W}, 6\ns_cbranch_scc1 {sk}")
        a(f"""s_mul_i32 s{S_T0}, s{S_W}, {32*2304}
s_lshl_b32 s{S_T1}, s{SID}, 6
s_add_u32 s{S_T0}, s{S_T0}, s{S_T1}
s_add_u32 s{S_T0}, s{S_T0}, {WS_HOP4:#x}
v_lshrrev_b32 v6, 2, v1
v_mul_u32_u24 v6, 2304, v6
v_and_b32 v7, 3, v1
v_lshlrev_b32 v7, 4, v7
v_add3_u32 v7, v6, v7, s{S_T0}
v_add_u32 v8, {16*2304}, v7
s_mov_b32 s{S_CNT}, 0""")
        loop = a.newlabel("Lg4")
        R = 128
        a(f"""{loop}:
buffer_load_dwordx4 v[{R}:{R+3}], v7, s[{SRD_WS}:{SRD_WS+3}], 0 offen sc1
buffer_load_dwordx4 v[{R+4}:{R+7}], v8, s[{SRD_WS}:{SRD_WS+3}], 0 offen sc1
s_waitcnt vmcnt(0)""")
        self.chk(6, [R + i for i in range(8)], 14)
        self.retry_if_bad(6, loop)
        self.stamp(8)
        a(f"v_pk_add_f32 v[{R}:{R+1}], v[{R}:{R+1}], v[{R+4}:{R+5}]\nv_pk_add_f32 v[{R+2}:{R+3}], v[{R+2}:{R+3}], v[{R+6}:{R+7}]")
        for sh in (4, 8):
            for r in range(4): a(f"v_add_f32_dpp v{R+r}, v{R+r}, v{R+r} row_ror:{sh} row_mask:0xf bank_mask:0xf")
        for r in range(4):
            a(f"v_mov_b32 v{R+4+r}, v{R+r}")
        for r in range(4):
            a(f"v_permlane32_swap_b32 v{R+4+r}, v{R+r}")
        for r in range(4):
            a(f"v_add_f32 v{R+r}, v{R+r}, v{R+4+r}")
        for r in range(4):
            a(f"v_mov_b32 v{R+4+r}, v{R+r}")
        for r in range(4):
            a(f"v_permlane16_swap_b32 v{R+4+r}, v{R+r}")
        for r in range(4):
            a(f"v_add_f32 v{R+r}, v{R+r}, v{R+4+r}")
        a(f"""s_lshl_b32 s{S_T0}, s{S_W}, 6
v_lshlrev_b32 v6, 4, v1
v_add_u32 v6, s{S_T0}, v6
s_mov_b32 exec_lo, 0xf
s_mov_b32 exec_hi, 0x0
ds_write_b128 v6, v[{R}:{R+3}] offset:{L_RED}
s_mov_b64 exec, -1
{sk}:
s_waitcnt lgkmcnt(0)
s_barrier
s_cmp_lg_u32 s{S_W}, 0
s_cbranch_scc1 L_Send""")
        a(f"v_and_b32 v7, 3, v1\nv_lshlrev_b32 v6, 4, v7")
        for w in range(6): a(f"ds_read_b128 v[{R+4*w}:{R+4*w+3}], v6 offset:{L_RED+64*w}")
        a(f"""s_lshl_b32 s{S_T0}, s{SID}, 2
v_add_u32 v8, s{S_T0}, v7
v_lshlrev_b32 v9, 5, v8
ds_read_b128 v[{X1}:{X1+3}], v9 offset:{L_ORED}
ds_read_b128 v[{GB}:{GB+3}], v9 offset:{L_ORED+16}
s_waitcnt lgkmcnt(0)""")
        for w in range(1, 6):
            a(f"v_pk_add_f32 v[{R}:{R+1}], v[{R}:{R+1}], v[{R+4*w}:{R+4*w+1}]\nv_pk_add_f32 v[{R+2}:{R+3}], v[{R+2}:{R+3}], v[{R+4*w+2}:{R+4*w+3}]")
        for r in range(4): self.rne(R + r, R + r)
        for r in range(4): a(f"v_mul_f32 v{R+r}, v{GB+r}, v{R+r}")
        for r in range(4): self.rne(R + r, R + r)
        for r in range(4): a(f"v_add_f32 v{R+r}, v{X1+r}, v{R+r}")
        for r in range(4): a(f"v_cvt_pk_bf16_f32 v{R+r}, v{R+r}, v{R+r}")
        a(f"""v_lshrrev_b32 v6, 4, v8
v_lshlrev_b32 v6, 7, v6
v_bfe_u32 v7, v8, 3, 1
v_lshlrev_b32 v7, 6, v7
v_and_b32 v9, 7, v8
v_lshlrev_b32 v9, 1, v9
v_add3_u32 v6, v6, v7, v9""")
        self.srd(SRD_C, P_OUT, 1152)
        a("s_mov_b64 exec, 15")
        for r in range(4): a(f"buffer_store_short v{R+r}, v6, s[{SRD_C}:{SRD_C+3}], 0 offen offset:{16*r}")
        a(f"""s_cmp_lg_u32 s{SID}, 0
s_cbranch_scc1 L_Send
s_add_u32 s{S_T0}, s{S_E}, 1
v_mov_b32 v6, s{S_T0}
v_mov_b32 v7, {WS_EPOCH}
s_mov_b64 exec, 1
buffer_store_dword v6, v7, s[{SRD_WS}:{SRD_WS+3}], 0 offen""")

    def build(self):
        a = self.a
        self.VMA, self.VWQ, self.VWO, self.VMR = 240, 241, 242, 243
        self.prologue()
        self.F()
        self.S()
        a("L_end:\ns_endpgm")
        body, nn = a.text()
        name = KN + "_kernel"
        s = HDR + f"; @launch grid=(256,1,1) block=(512,1,1) lds={LDS_BYTES}\n"
        s += '.amdgcn_target "amdgcn-amd-amdhsa--gfx950"\n.text\n' + f".globl {name}\n.p2align 8\n.type {name},@function\n{name}:\n" + body
        s += f""".section .rodata,"a"
.p2align 6
.amdhsa_kernel {name}
  .amdhsa_next_free_vgpr 256
  .amdhsa_next_free_sgpr 102
  .amdhsa_accum_offset 256
  .amdhsa_group_segment_fixed_size 0
  .amdhsa_kernarg_size 112
  .amdhsa_user_sgpr_count 2
  .amdhsa_user_sgpr_kernarg_segment_ptr 1
  .amdhsa_system_sgpr_workgroup_id_x 1
.end_amdhsa_kernel
"""
        return s, nn

if __name__ == "__main__":
    import argparse
    ap = argparse.ArgumentParser()
    ap.add_argument("-o", default="cdna_kernels/%s.s" % KN)
    ap.add_argument("--stamps", action="store_true")
    ap.add_argument("--fake-xcc", action="store_true")
    ap.add_argument("--no-nt", action="store_true")
    ap.add_argument("--dbgstamp", action="store_true")
    args = ap.parse_args()
    g = Gen(stamps=args.stamps, fake_xcc=args.fake_xcc, nt=not args.no_nt, dbgstamp=args.dbgstamp)
    txt, nn = g.build()
    open(args.o, "w").write(txt)
    print("wrote", args.o, "lines", txt.count("\n"), "hazard nops", nn)
```

```python
import sys, struct
sys.path.insert(0, "work")
from asmlib import Asm
KN = "adaLN_cond__sliding_block_cached__geglu_ffn__decode"
HDR = open("cdna_kernels/%s.s.ref" % KN).read().split("; Override")[0]
def f2u(x): return struct.unpack("<I", struct.pack("<f", x))[0]
LOG2E = 1.4426950408889634

WS_EPOCH = 0x0
WS_HOP0 = 0x1000
WS_MODR = 0x8000
WS_Q = 0x10000
WS_HOP2 = 0x20000
WS_ML = 0x50000
WS_HOP3 = 0x60000
WS_HOP4 = 0x80000
WS_STAMP = 0x100000
WS_SIZE = 0x200000
L_XQ = 0
L_XQ2 = 3200
L_QL = 6400
L_ML = 6912
L_SLOT = 7040
L_ML2 = 7104
L_STAT = 7056
L_RED = 7168
L_ORED = 13312
L_AP = 24576
LDS_BYTES = 86016
XQS = 100
SPIN = 20000

S_G, S_C, S_W, S_TAG, S_E = 3, 4, 5, 6, 7
S_T0, S_T1, S_T2, S_T3 = 8, 9, 10, 11
S_X = 12
S_FF = 14
S_CNT = 15
P_X, P_K, P_V, P_WQ, P_WO, P_BX, P_WG, P_WU = 16, 18, 20, 22, 24, 26, 28, 30
P_WD, P_C, P_WM, P_OUT, P_DBG, P_WS = 32, 34, 36, 38, 40, 42
SRD_WS, SRD_A, SRD_B, SRD_C = 44, 48, 52, 56
S_K1, S_K2, S_K3 = 60, 61, 62
S_Q = 64
S_F, S_M = 96, 97
S_MA, S_TAU = 98, 99
V_LANE = 1; V_MASK = 2
V_XQW = 15
V_G16 = 13
V_COL = 11
V_TAG = 14
V_REDW = 240
V_XQR = 241
V_L16 = 242

class Gen:
    def __init__(self, stamps=False, fake_xcc=False, nt=True, dbgstamp=False, throttle=0, depth=5, sdepth=7, **kw):
        self.D = depth; self.SD = sdepth; self.nb = 0; self.GP = kw.get('gp', 2); self.DT = kw.get('dt', 3)
        self.a = Asm(); self.dbgstamp = dbgstamp; self.stamps = stamps or dbgstamp; self.fake_xcc = fake_xcc
        self.nt = " nt" if nt else ""
        self.throttle = throttle
        self.kw = kw
    def srd(self, srd, ptr, size):
        self.a(f"s_mov_b32 s{srd}, s{ptr}\ns_mov_b32 s{srd+1}, s{ptr+1}\ns_mov_b32 s{srd+2}, {size:#x}\ns_mov_b32 s{srd+3}, 0x00020000")
    def set_exec(self, m):
        if m == -1: self.a("s_mov_b64 exec, -1")
        elif 0 <= m <= 64: self.a(f"s_mov_b64 exec, {m}")
        else: self.a(f"s_mov_b32 exec_lo, {m & 0xffffffff:#x}\ns_mov_b32 exec_hi, {m >> 32:#x}")
    def exec_t144(self):
        a = self.a
        lbl = a.newlabel("Lx")
        a(f"s_mov_b64 exec, -1\ns_cmp_lg_u32 s{S_W}, 2\ns_cbranch_scc1 {lbl}")
        self.set_exec(0xffff)
        a(f"{lbl}:")
    def rne_n(self, regs, T):
        a = self.a
        regs = list(regs)
        i = 0
        while i < len(regs):
            if i + 1 < len(regs):
                x, y = regs[i], regs[i + 1]
                t = T + (i // 2) % 2
                a(f"v_cvt_pk_bf16_f32 v{t}, v{x}, v{y}\nv_lshlrev_b32 v{x}, 16, v{t}\nv_and_b32 v{y}, 0xffff0000, v{t}")
                i += 2
            else:
                x = regs[i]
                a(f"v_cvt_pk_bf16_f32 v{x}, v{x}, v{x}\nv_and_b32 v{x}, 0xffff0000, v{x}")
                i += 1
    def gate(self, D=None):
        D = D or self.D
        self.nb += 1
        if self.throttle and getattr(self, "inF", False) and self.nb <= self.throttle + 2: D = 2
        if self.nb > D: self.a(f"s_waitcnt vmcnt({D-1})")
    def stamp(self, idx):
        if not self.stamps: return
        self.a(f"s_memrealtime s[100:101]\ns_waitcnt lgkmcnt(0)\nv_writelane_b32 v250, s100, {idx}")
    def stamp_flush(self):
        if not self.stamps: return
        a = self.a
        if self.dbgstamp:
            sk = a.newlabel("Ldbg")
            a(f"s_mov_b64 exec, -1\ns_cmp_lg_u32 s{S_W}, 0\ns_cbranch_scc1 {sk}\nv_readlane_b32 s{S_T0}, v250, 0\ns_nop 1\nv_subrev_u32 v251, s{S_T0}, v250")
            for wg, base, idxs in ((0, 9, (1, 2, 5, 7, 8, 10, 11)), (192, 2, (2, 3, 4, 5, 6, 11))):
                nx = a.newlabel("Ldbg")
                a(f"s_cmp_lg_u32 s2, {wg}\ns_cbranch_scc1 {nx}")
                for j, ix in enumerate(idxs):
                    a(f"v_readlane_b32 s{S_T0}, v251, {ix}\ns_nop 1\nv_mov_b32 v252, s{S_T0}\nv_mov_b32 v253, {4*(base+j)}\ns_mov_b64 exec, 1\nglobal_store_dword v253, v252, s[{P_DBG}:{P_DBG+1}]\ns_mov_b64 exec, -1")
                a(f"{nx}:")
            a(f"{sk}:")
            return
        a(f"""s_mov_b64 exec, -1
s_lshl_b32 s{S_T0}, s2, 3
s_add_u32 s{S_T0}, s{S_T0}, s{S_W}
s_lshl_b32 s{S_T0}, s{S_T0}, 8
s_add_u32 s{S_T0}, s{S_T0}, {WS_STAMP}
v_lshlrev_b32 v251, 2, v1
v_add_u32 v251, s{S_T0}, v251
buffer_store_dword v250, v251, s[{SRD_WS}:{SRD_WS+3}], 0 offen""")
    def wave_sum2(self, x, y):
        a = self.a
        for sh in ("row_shr:1 row_mask:0xf", "row_shr:2 row_mask:0xf", "row_shr:4 row_mask:0xf", "row_shr:8 row_mask:0xf", "row_bcast:15 row_mask:0xa", "row_bcast:31 row_mask:0xc"):
            a(f"v_add_f32_dpp v{x}, v{x}, v{x} {sh} bank_mask:0xf")
            a(f"v_add_f32_dpp v{y}, v{y}, v{y} {sh} bank_mask:0xf")
    def mkB(self, b, x):
        for r in range(4): self.a(f"v_and_b32 v{b+r}, v{x}, v{V_MASK+r}")
    def g64_steps(self, acc, A, X, n, Bt, first=True, waits=None):
        a = self.a
        self.mkB(Bt, X[0])
        for i in range(n):
            if i + 1 < n: self.mkB(Bt + 4 * ((i + 1) & 1), X[i + 1])
            if waits and waits[i] is not None: a(f"s_waitcnt vmcnt({waits[i]})")
            b = Bt + 4 * (i & 1)
            c = "0" if (first and i == 0) else f"v[{acc}:{acc+3}]"
            a(f"v_mfma_f32_16x16x32_bf16 v[{acc}:{acc+3}], v[{A+4*i}:{A+4*i+3}], v[{b}:{b+3}], {c}")
    def half_add(self, accs, T):
        a = self.a
        for k, acc in enumerate(accs):
            for r in range(4): a(f"v_mov_b32 v{T+4*k+r}, v{acc+r}")
        for k, acc in enumerate(accs):
            for r in range(4): a(f"v_permlane32_swap_b32 v{T+4*k+r}, v{acc+r}")
        for k, acc in enumerate(accs):
            for r in range(4): a(f"v_add_f32_dpp v{acc+r}, v{acc+r}, v{T+4*k+r} row_ror:8 row_mask:0xf bank_mask:0xf")
    def tagw(self, regs):
        for r in regs: self.a(f"v_bfi_b32 v{r}, s{S_FF}, v{V_TAG}, v{r}")
    def chk(self, acc, regs, first=True):
        for i, r in enumerate(regs):
            if first and i == 0: self.a(f"v_xor_b32 v{acc}, v{r}, v{V_TAG}")
            else: self.a(f"v_bitop3_b32 v{acc}, v{acc}, v{r}, v{V_TAG} bitop3:0xf6")
    def maskw(self, regs, m=0xffffff00):
        for r in regs: self.a(f"v_and_b32 v{r}, {m:#x}, v{r}")
    def retry_if_bad(self, acc, loop):
        a = self.a
        ok = a.newlabel("Lok")
        a(f"""v_and_b32 v{acc}, 0xff, v{acc}
v_cmp_ne_u32 vcc, 0, v{acc}
s_add_u32 s{S_CNT}, s{S_CNT}, 1
s_cbranch_vccz {ok}
s_cmp_lt_u32 s{S_CNT}, {SPIN}
s_cbranch_scc1 {loop}
{ok}:""")
    def gather_retry(self, loads, MB, A, init_masks, mask_val=0xffffff00, sleep=1):
        a = self.a
        loop = a.newlabel("Lgr"); done = a.newlabel("Lgd")
        for j, m in enumerate(init_masks):
            if m == "exec": a(f"s_mov_b64 s[{MB+2*j}:{MB+2*j+1}], exec")
            elif m == -1: a(f"s_mov_b64 s[{MB+2*j}:{MB+2*j+1}], -1")
            else: a(f"s_mov_b32 s{MB+2*j}, {m & 0xffffffff:#x}\ns_mov_b32 s{MB+2*j+1}, {m >> 32:#x}")
        a(f"s_mov_b32 s{S_CNT}, 0\n{loop}:")
        for j, (dst, ar, imm) in enumerate(loads):
            sk = a.newlabel("Lgs")
            a(f"s_mov_b64 exec, s[{MB+2*j}:{MB+2*j+1}]\ns_cbranch_execz {sk}")
            self.wsld(dst, ar, imm)
            a(f"{sk}:")
        a("s_waitcnt vmcnt(0)")
        for j, (dst, ar, imm) in enumerate(loads):
            sk = a.newlabel("Lgc")
            a(f"s_mov_b64 exec, s[{MB+2*j}:{MB+2*j+1}]\ns_cbranch_execz {sk}")
            rs = [dst + i for i in range(4)]
            self.chk(A, rs)
            a(f"v_and_b32 v{A}, 0xff, v{A}\nv_cmp_ne_u32 s[{MB+2*j}:{MB+2*j+1}], 0, v{A}")
            self.maskw(rs, mask_val)
            a(f"{sk}:")
        n = len(loads)
        a(f"s_mov_b64 s[{S_X}:{S_X+1}], s[{MB}:{MB+1}]")
        for j in range(1, n): a(f"s_or_b64 s[{S_X}:{S_X+1}], s[{S_X}:{S_X+1}], s[{MB+2*j}:{MB+2*j+1}]")
        if n == 1: a(f"s_cmp_lg_u64 s[{S_X}:{S_X+1}], 0")
        a(f"s_cbranch_scc0 {done}\ns_add_u32 s{S_CNT}, s{S_CNT}, 1")
        if sleep: a(f"s_sleep {sleep}")
        a(f"s_cmp_lt_u32 s{S_CNT}, {SPIN}\ns_cbranch_scc1 {loop}\n{done}:\ns_mov_b64 exec, -1")
    def ln_stage1(self, X, S1):
        a = self.a
        S2 = S1 + 1
        a(f"""v_add_f32 v{S1}, v{X}, v{X+1}
v_mul_f32 v{S2}, v{X}, v{X}
v_add_f32 v{S1}, v{S1}, v{X+2}
v_fmac_f32 v{S2}, v{X+1}, v{X+1}
v_add_f32 v{S1}, v{S1}, v{X+3}
v_fmac_f32 v{S2}, v{X+2}, v{X+2}
v_fmac_f32 v{S2}, v{X+3}, v{X+3}""")
        self.wave_sum2(S1, S2)
        a(f"""s_lshl_b32 s{S_T0}, s{S_W}, 3
s_add_u32 s{S_T0}, s{S_T0}, {L_STAT}
v_mov_b32 v{S1+2}, s{S_T0}
s_mov_b32 exec_lo, 0
s_mov_b32 exec_hi, 0x80000000
ds_write_b64 v{S1+2}, v[{S1}:{S1+1}]
s_mov_b64 exec, -1""")
    def ln_stage2(self, X, O, T):
        a = self.a
        a(f"""v_mov_b32 v{T}, {L_STAT}
ds_read_b128 v[{T+4}:{T+7}], v{T}
ds_read_b64 v[{T+2}:{T+3}], v{T} offset:16
s_waitcnt lgkmcnt(0)
v_pk_add_f32 v[{T}:{T+1}], v[{T+4}:{T+5}], v[{T+6}:{T+7}]
v_pk_add_f32 v[{T}:{T+1}], v[{T}:{T+1}], v[{T+2}:{T+3}]
v_mul_f32 v{T}, {f2u(1.0/576):#x}, v{T}
v_mul_f32 v{T+1}, {f2u(1.0/576):#x}, v{T+1}
v_fma_f32 v{T+1}, -v{T}, v{T}, v{T+1}
v_max_f32 v{T+1}, 0, v{T+1}
v_cvt_pk_bf16_f32 v{T+2}, v{T}, v{T+1}
v_lshlrev_b32 v{T}, 16, v{T+2}
v_and_b32 v{T+1}, 0xffff0000, v{T+2}
v_add_f32 v{T+1}, {f2u(1e-5):#x}, v{T+1}""")
        for r in range(4): a(f"v_sub_f32 v{O+r}, v{X+r}, v{T}")
        a(f"v_cvt_pk_bf16_f32 v{T+1}, v{T+1}, v{T+1}\nv_and_b32 v{T+1}, 0xffff0000, v{T+1}\nv_sqrt_f32 v{T+1}, v{T+1}")
        self.rne_n([O, O + 1, O + 2, O + 3], T + 2)
        a(f"v_cvt_pk_bf16_f32 v{T+1}, v{T+1}, v{T+1}\nv_and_b32 v{T+1}, 0xffff0000, v{T+1}\nv_rcp_f32 v{T+1}, v{T+1}\ns_nop 0")
        for r in range(4): a(f"v_mul_f32 v{O+r}, v{O+r}, v{T+1}")
        self.rne_n([O, O + 1, O + 2, O + 3], T + 2)
    def modulate1(self, CS, T):
        for r in range(4): self.a(f"v_add_f32 v{CS+r}, 1.0, v{CS+r}")
        self.rne_n([CS, CS + 1, CS + 2, CS + 3], T)
    def modulate2(self, LN, CS1, SH, T):
        a = self.a
        for r in range(4): a(f"v_mul_f32 v{LN+r}, v{LN+r}, v{CS1+r}")
        self.rne_n([LN, LN + 1, LN + 2, LN + 3], T)
        for r in range(4): a(f"v_add_f32 v{LN+r}, v{LN+r}, v{SH+r}")
        for r in range(4): a(f"v_cvt_pk_bf16_f32 v{LN+r}, v{LN+r}, v{LN+r}")
    def xq_write(self, P, base):
        for r in range(4): self.a(f"ds_write_b32 v{V_XQW}, v{P+r} offset:{base + r*48}")
    def xq_read(self, XR, base, n=3):
        for i in range(n): self.a(f"ds_read_b128 v[{XR+4*i}:{XR+4*i+3}], v{V_XQR} offset:{base+16*i}")
    def red_write(self, ACC, blk):
        self.a(f"ds_write_b128 v{V_REDW}, v[{ACC}:{ACC+3}] offset:{L_RED + blk*2048}")
    def red_sum(self, R0, nblk, VA):
        a = self.a
        for w in range(8): a(f"ds_read_b128 v[{R0+4*w}:{R0+4*w+3}], v{VA} offset:{L_RED + 256*w}")
        a("s_waitcnt lgkmcnt(0)")
        self.tree_add(R0, 8)
    def tree_add(self, R0, n):
        a = self.a
        st = 1
        while st < n:
            for k in range(0, n - st, 2 * st):
                x, y = R0 + 4 * k, R0 + 4 * (k + st)
                a(f"v_pk_add_f32 v[{x}:{x+1}], v[{x}:{x+1}], v[{y}:{y+1}]\nv_pk_add_f32 v[{x+2}:{x+3}], v[{x+2}:{x+3}], v[{y+2}:{y+3}]")
            st *= 2
    def redsum_addr(self, VA, nblk):
        a = self.a
        a(f"v_lshrrev_b32 v{VA}, 4, v1\nv_min_u32 v{VA}, {nblk-1}, v{VA}\nv_lshlrev_b32 v{VA}, 11, v{VA}\nv_and_b32 v6, 15, v1\nv_lshl_add_u32 v{VA}, v6, 4, v{VA}")
    def load_vec4_u16(self, dst, srd, voff):
        for r in range(4): self.a(f"buffer_load_ushort v{dst+r}, v{voff}, s[{srd}:{srd+3}], 0 offen offset:{r*16}")
    def wsld(self, dst, voff, imm=0, soff="0"):
        self.a(f"buffer_load_dwordx4 v[{dst}:{dst+3}], v{voff}, s[{SRD_WS}:{SRD_WS+3}], {soff} offen offset:{imm} sc1")
    def wsst(self, src, voff, imm=0):
        self.a(f"buffer_store_dwordx4 v[{src}:{src+3}], v{voff}, s[{SRD_WS}:{SRD_WS+3}], 0 offen offset:{imm} sc1")

    def mod_preload(self, MD, T, need_mod):
        a = self.a
        lbl = a.newlabel("Lmp")
        for i, mb in enumerate(need_mod): a(f"v_add_u32 v{T+1+i}, {WS_MODR + mb*256:#x}, v{V_G16}")
        a(f"s_mov_b64 s[62:63], -1\ns_cmp_lg_u32 s{S_W}, 2\ns_cbranch_scc1 {lbl}\ns_mov_b32 s62, 0xffff\ns_mov_b32 s63, 0\n{lbl}:\ns_mov_b64 exec, s[62:63]")
        self.gather_retry([(MD + 4 * i, T + 1 + i, 0) for i in range(len(need_mod))], 64, T, ["exec"] * len(need_mod), 0xffff0000)
    def a_gather(self, G, T):
        a = self.a
        a(f"""s_mul_i32 s{S_T0}, s{S_W}, 4608
s_add_u32 s{S_T0}, s{S_T0}, {WS_HOP3:#x}
v_add_u32 v{T+1}, s{S_T0}, v{V_L16}
v_add_u32 v{T+2}, 2304, v{T+1}
s_mul_i32 s{S_T0}, s{S_W}, 2304
v_add_u32 v{T+3}, s{S_T0}, v{V_L16}""")
        for r in range(4): a(f"v_mov_b32 v{G+8+r}, 0\nv_mov_b32 v{G+20+r}, 0")
        loads = [(G, T + 1, 0), (G + 4, T + 1, 1024), (G + 8, T + 1, 2048), (G + 12, T + 2, 0), (G + 16, T + 2, 1024), (G + 20, T + 2, 2048)]
        self.gather_retry(loads, 64, T, [-1, -1, 0xffff, -1, -1, 0xffff])
        for k in range(0, 12, 2): a(f"v_pk_add_f32 v[{G+k}:{G+k+1}], v[{G+k}:{G+k+1}], v[{G+12+k}:{G+12+k+1}]")
        a(f"ds_write_b128 v{T+3}, v[{G}:{G+3}] offset:{L_AP}\nds_write_b128 v{T+3}, v[{G+4}:{G+7}] offset:{L_AP+1024}")
        self.set_exec(0xffff)
        a(f"ds_write_b128 v{T+3}, v[{G+8}:{G+11}] offset:{L_AP+2048}\ns_mov_b64 exec, -1")
    def x1_finish(self, VX, G, X1, T, GA):
        a = self.a
        for w in range(8): a(f"ds_read_b128 v[{G+4*w}:{G+4*w+3}], v{V_G16} offset:{L_AP + 2304*w}")
        a("s_waitcnt lgkmcnt(0)")
        self.tree_add(G, 8)
        a4 = [G, G + 1, G + 2, G + 3]
        self.rne_n(a4, T)
        for r in range(4): a(f"v_mul_f32 v{G+r}, v{GA+r}, v{G+r}")
        self.rne_n(a4, T)
        for r in range(4): a(f"v_add_f32 v{X1+r}, v{VX+r}, v{G+r}")
        self.rne_n([X1, X1 + 1, X1 + 2, X1 + 3], T)

    def prologue(self):
        a = self.a
        a(f"""s_cmp_ge_u32 s2, 256
s_cbranch_scc1 L_end
s_load_dwordx16 s[16:31], s[0:1], 0
s_load_dwordx8 s[32:39], s[0:1], 64
s_load_dwordx4 s[40:43], s[0:1], 96""")
        if self.stamps: a("v_mov_b32 v250, 0")
        self.stamp(0)
        a(f"""v_and_b32 v1, 63, v0
v_lshrrev_b32 v6, 6, v0
s_mov_b32 s{S_FF}, 0xff
v_readfirstlane_b32 s{S_W}, v6
s_cmp_ge_u32 s2, 192
s_cbranch_scc1 L_S""")
    def common_setup(self):
        a = self.a
        a(f"""v_and_b32 v6, 1, v1
v_mov_b32 v7, 0xffff0000
v_mov_b32 v8, 0xffff
v_cmp_eq_u32 vcc, 1, v6
v_bfe_u32 v6, v1, 1, 2
v_cndmask_b32 v9, v8, v7, vcc""")
        for r in range(4):
            a(f"v_cmp_eq_u32 vcc, {r}, v6\ns_nop 1\nv_cndmask_b32 v{V_MASK+r}, 0, v9, vcc")
        a(f"""v_and_b32 v6, 7, v1
v_bfe_u32 v7, v1, 4, 1
v_lshl_add_u32 v6, v7, 3, v6
v_lshlrev_b32 v6, 4, v6
s_lshl_b32 s{S_T0}, s{S_W}, 8
v_add_u32 v{V_REDW}, s{S_T0}, v6
v_lshrrev_b32 v6, 3, v1
v_mul_u32_u24 v6, {XQS*4}, v6
s_mul_i32 s{S_T0}, s{S_W}, 48
v_add_u32 v{V_XQR}, s{S_T0}, v6
v_lshlrev_b32 v{V_L16}, 4, v1""")
    def thread_setup(self):
        a = self.a
        a(f"""v_lshlrev_b32 v{V_G16}, 4, v0
v_and_b32 v6, 7, v0
v_bfe_u32 v7, v0, 3, 1
v_lshrrev_b32 v8, 4, v0
v_mul_u32_u24 v{V_XQW}, {XQS*4}, v6
v_mul_u32_u24 v9, 192, v7
v_lshlrev_b32 v10, 2, v8
v_add3_u32 v{V_XQW}, v{V_XQW}, v9, v10
v_lshlrev_b32 v{V_COL}, 7, v8
v_lshlrev_b32 v9, 6, v7
v_lshlrev_b32 v10, 1, v6
v_add3_u32 v{V_COL}, v{V_COL}, v9, v10""")
    def get_tag(self):
        a = self.a
        a(f"""s_waitcnt lgkmcnt(0)
s_add_u32 s{S_TAG}, s{S_E}, 1
s_and_b32 s{S_TAG}, s{S_TAG}, 0xff
v_mov_b32 v{V_TAG}, s{S_TAG}""")

    def F(self):
        a = self.a; nt = self.nt
        K, V, Q, GU, DN, SC, OA = 16, 64, 112, 128, 164, 188, 200
        VX = 204
        VK, VV = 208, 209
        if self.kw.get("fexit"): a("s_endpgm")
        a(f"""s_mul_i32 s{S_G}, s2, 43691
s_lshr_b32 s{S_G}, s{S_G}, 19
s_mul_i32 s{S_T0}, s{S_G}, 12
s_sub_u32 s{S_C}, s2, s{S_T0}
s_mul_i32 s{S_T0}, s{S_C}, 21846
s_lshr_b32 s{S_T0}, s{S_T0}, 16
s_mul_i32 s{S_T1}, s{S_T0}, 3
s_sub_u32 s{S_T1}, s{S_C}, s{S_T1}
s_lshl_b32 s{S_T0}, s{S_T0}, 6
s_cmp_eq_u32 s{S_T1}, 0
s_cselect_b32 s{S_T2}, 3, 6
s_cselect_b32 s{S_MA}, 1, 0
s_cmp_eq_u32 s{S_T1}, 1
s_cselect_b32 s{S_T3}, 19, 0
s_add_u32 s{S_T0}, s{S_T0}, s{S_T3}
s_cmp_eq_u32 s{S_T1}, 2
s_cselect_b32 s{S_T3}, 41, 0
s_cselect_b32 s{S_T2}, 7, s{S_T2}
s_add_u32 s{S_T0}, s{S_T0}, s{S_T3}
s_mul_i32 s{S_T3}, s{S_W}, 3
s_add_u32 s{S_T1}, s{S_T2}, s{S_W}
s_add_u32 s{S_T1}, s{S_T1}, s{S_W}
s_cmp_lt_u32 s{S_W}, s{S_T2}
s_cselect_b32 s{S_T3}, s{S_T3}, s{S_T1}
s_cselect_b32 s{S_M}, 3, 2
s_add_u32 s{S_T0}, s{S_T0}, s{S_T3}
s_lshl_b32 s{S_T0}, s{S_T0}, 12
s_lshl_b32 s{S_T1}, s{S_G}, 24
s_add_u32 s{S_T0}, s{S_T0}, s{S_T1}
s_add_u32 s{S_T0}, s{S_T0}, {61440*256}
s_mul_i32 s{S_TAU}, s{S_C}, 21846
s_lshr_b32 s{S_TAU}, s{S_TAU}, 16
s_lshl_b32 s{S_T1}, s{S_G}, 2
s_add_u32 s{S_TAU}, s{S_TAU}, s{S_T1}
s_cmp_lt_u32 s{S_TAU}, 54
s_cselect_b32 s{S_MA}, s{S_MA}, 0
s_mov_b32 s{S_K1}, 4096
s_mov_b32 s{S_K2}, 8192
v_and_b32 v6, 15, v1
v_lshrrev_b32 v7, 4, v1
v_lshlrev_b32 v8, 8, v6
v_lshlrev_b32 v9, 4, v7
v_add3_u32 v{VK}, v8, v9, s{S_T0}
v_lshlrev_b32 v8, 4, v6
v_lshlrev_b32 v9, 10, v7
v_add3_u32 v{VV}, v8, v9, s{S_T0}
s_waitcnt lgkmcnt(0)
s_load_dword s{S_E}, s[{P_WS}:{P_WS+1}], {WS_EPOCH}""")
        self.srd(SRD_A, P_K, 1 << 28)
        th = self.throttle
        def kload(gi, s, soff):
            self.gate()
            a(f"buffer_load_dwordx4 v[{K+16*gi+4*s}:{K+16*gi+4*s+3}], v{VK}, s[{SRD_A}:{SRD_A+3}], {soff} offen offset:{64*s}{nt}")
        self.kload = kload
        self.nb = 0; self.inF = True
        MA, XR, ACC, BT, G = V, Q, SC, Q + 4, GU
        nomod = a.newlabel("Lnm")
        a(f"s_cmp_eq_u32 s{S_MA}, 0\ns_cbranch_scc1 {nomod}")
        a(f"""s_mul_i32 s62, s{S_TAU}, 3641
s_lshr_b32 s62, s62, 16
s_mul_i32 s{S_T0}, s62, 18
s_sub_u32 s63, s{S_TAU}, s{S_T0}
s_mul_i32 s{S_T0}, s62, {192*6912}
s_lshl_b32 s{S_T1}, s63, 7
s_add_u32 s{S_T0}, s{S_T0}, s{S_T1}""")
        self.tile_addr(12, 6912, S_T0)
        a(f"""v_lshrrev_b32 v8, 3, v1
s_lshl_b32 s{S_T3}, s{S_W}, 3
v_add_u32 v8, s{S_T3}, v8
v_lshlrev_b32 v8, 1, v8
s_mul_i32 s{S_T3}, s62, 384""")
        self.srd(SRD_B, P_WM, 576 * 6912); self.srd(SRD_C, P_C, 1152)
        for i in range(3):
            a(f"v_add_u32 v6, {64*i*6912}, v12\nbuffer_load_dwordx4 v[{MA+4*i}:{MA+4*i+3}], v6, s[{SRD_B}:{SRD_B+3}], 0 offen{nt}")
        for i in range(3): a(f"buffer_load_ushort v{XR+i}, v8, s[{SRD_C}:{SRD_C+3}], s{S_T3} offen offset:{128*i}")
        a(f"{nomod}:")
        for s_ in range(2): kload(0, s_, "0")
        self.srd(SRD_WS, P_WS, WS_SIZE)
        self.thread_setup()
        self.common_setup()
        nomod = a.newlabel("Lnm")
        a(f"s_cmp_eq_u32 s{S_MA}, 0\ns_cbranch_scc1 {nomod}")
        self.redsum_addr(10, 1)
        a(f"""s_mul_i32 s{S_T0}, s62, 4608
s_lshl_b32 s{S_T1}, s63, 8
s_add_u32 s{S_T0}, s{S_T0}, s{S_T1}
s_add_u32 s{S_T0}, s{S_T0}, {WS_HOP0:#x}
v_add_u32 v9, s{S_T0}, v{V_L16}
s_waitcnt vmcnt(2)""")
        self.stamp(12)
        self.silu_pair([XR + i for i in range(3)], 6)
        self.g64_steps(ACC, MA, [XR + i for i in range(3)], 3, BT)
        self.half_add([ACC], BT)
        self.set_exec(0x00ff00ff)
        self.red_write(ACC, 0)
        a("s_mov_b64 exec, -1")
        self.get_tag()
        a("s_barrier")
        sk = a.newlabel("Lmp")
        a(f"s_cmp_lg_u32 s{S_W}, 7\ns_cbranch_scc1 {sk}")
        self.red_sum(G, 1, 10)
        self.tagw([G, G + 1, G + 2, G + 3])
        self.set_exec(0xffff)
        self.wsst(G, 9)
        a(f"s_mov_b64 exec, -1\n{sk}:\ns_barrier\n{nomod}:")
        self.srd(SRD_B, P_V, 1 << 28)
        sk = a.newlabel("Lfx")
        for r in range(4): a(f"v_mov_b32 v{VX+r}, 0")
        a(f"s_cmp_ge_u32 s{S_W}, 3\ns_cbranch_scc1 {sk}")
        self.srd(SRD_C, P_X, 1152)
        self.exec_t144()
        self.load_vec4_u16(VX, SRD_C, V_COL)
        a(f"s_mov_b64 exec, -1\n{sk}:")
        sk = a.newlabel("Lfa")
        a(f"s_cmp_lg_u32 s{S_W}, 0\ns_cbranch_scc1 {sk}")
        if self.fake_xcc: a(f"s_and_b32 s{S_F}, s2, 3")
        else: a(f"s_getreg_b32 s{S_F}, hwreg(HW_REG_XCC_ID, 0, 4)\ns_and_b32 s{S_F}, s{S_F}, 7")
        a(f"""s_lshl_b32 s{S_T1}, s{S_F}, 5
v_mov_b32 v210, s{S_T1}
v_mov_b32 v211, 1
s_mov_b64 exec, 1
global_atomic_add v211, v210, v211, s[{P_DBG}:{P_DBG+1}] sc0 sc1
s_mov_b64 exec, -1
{sk}:""")
        for s_ in range(2, 4): kload(0, s_, "0")
        self.nb_at_split = self.nb
        lab2 = "L_F2"; join = "L_Fjoin"
        a(f"s_cmp_eq_u32 s{S_M}, 2\ns_cbranch_scc1 {lab2}")
        for NG in (3, 2):
            if NG == 2: a(f"{lab2}:")
            self.nb = self.nb_at_split
            self.F_attn(NG, K, V, Q, GU, SC, OA, VK, VV)
            if NG == 3: a(f"s_branch {join}")
        a(f"{join}:")
        self.F_tail(K, GU, DN, OA, VX)

    def F_slot(self):
        a = self.a
        okl = a.newlabel("Lslok"); lp = a.newlabel("Lsllp"); lp2 = a.newlabel("Lsl2"); fin = a.newlabel("Lslf")
        a(f"""v_readfirstlane_b32 s{S_T0}, v211
s_cmp_lt_u32 s{S_T0}, 24
s_cbranch_scc1 {okl}
v_mov_b32 v210, 4
v_mov_b32 v211, 1
s_mov_b64 exec, 1
global_atomic_add v211, v210, v211, s[{P_DBG}:{P_DBG+1}] sc0 sc1
s_mov_b32 exec_lo, 0xff
s_mov_b32 exec_hi, 0
v_lshlrev_b32 v210, 5, v1
s_waitcnt vmcnt(0)
v_readfirstlane_b32 s{S_T1}, v211
s_mov_b32 s{S_CNT}, 0
{lp}:
global_load_dword v212, v210, s[{P_DBG}:{P_DBG+1}] sc1
s_waitcnt vmcnt(0)
s_mov_b32 s{S_T2}, 0""")
        for x in range(8): a(f"v_readlane_b32 s{S_T3}, v212, {x}\ns_add_u32 s{S_T2}, s{S_T2}, s{S_T3}")
        a(f"""s_add_u32 s{S_CNT}, s{S_CNT}, 1
s_cmp_ge_u32 s{S_T2}, 192
s_cbranch_scc1 {lp2}
s_cmp_lt_u32 s{S_CNT}, {SPIN}
s_cbranch_scc1 {lp}
{lp2}:
s_mov_b32 s{S_F}, 0""")
        for x in range(8):
            nx = a.newlabel("Lnx")
            a(f"""v_readlane_b32 s{S_T3}, v212, {x}
s_min_u32 s{S_T3}, s{S_T3}, 24
s_sub_u32 s{S_T2}, 24, s{S_T3}
s_cmp_ge_u32 s{S_T1}, s{S_T2}
s_cbranch_scc1 {nx}
s_add_u32 s{S_F}, s{S_T3}, s{S_T1}
s_add_u32 s{S_F}, s{S_F}, {24*x}
s_branch {fin}
{nx}:
s_sub_u32 s{S_T1}, s{S_T1}, s{S_T2}""")
        a(f"""s_branch {fin}
{okl}:
s_mul_i32 s{S_F}, s{S_F}, 24
s_add_u32 s{S_F}, s{S_F}, s{S_T0}
{fin}:
s_mov_b64 exec, -1
s_min_u32 s{S_F}, s{S_F}, 191
v_mov_b32 v210, {L_SLOT}
v_mov_b32 v211, s{S_F}
ds_write_b32 v210, v211""")

    def F_attn(self, NG, K, V, Q, GU, SC, OA, VK, VV):
        a = self.a; nt = self.nt
        soff = ["0", f"s{S_K1}", f"s{S_K2}"]
        for gi in range(1, NG):
            for s in range(4): self.kload(gi, s, soff[gi])
        def vload(gi):
            for r in range(4):
                self.gate()
                a(f"buffer_load_dwordx4 v[{V+16*gi+4*r}:{V+16*gi+4*r+3}], v{VV}, s[{SRD_B}:{SRD_B+3}], {soff[gi]} offen offset:{256*r}{nt}")
        vload(0)
        self.stamp(1)
        self.get_tag()
        sk = a.newlabel("Lsl")
        a(f"s_cmp_lg_u32 s{S_W}, 0\ns_cbranch_scc1 {sk}\ns_waitcnt vmcnt({self.D})")
        self.F_slot()
        a(f"{sk}:")
        a(f"""s_lshl_b32 s{S_T0}, s{S_G}, 10
s_lshl_b32 s{S_T1}, s{S_W}, 7
s_add_u32 s{S_T0}, s{S_T0}, s{S_T1}
s_add_u32 s{S_T0}, s{S_T0}, {WS_Q:#x}
s_add_u32 s{S_X}, s{P_WS}, s{S_T0}
s_addc_u32 s{S_X+1}, s{P_WS+1}, 0
s_mov_b32 s{S_CNT}, 0
v_and_b32 v6, 3, v1
v_lshrrev_b32 v7, 2, v1
v_lshlrev_b32 v6, 4, v6
v_lshlrev_b32 v7, 1, v7
s_lshl_b32 s{S_T1}, s{S_W}, 6
s_add_u32 s{S_T1}, s{S_T1}, {L_QL}
v_add3_u32 v8, v6, v7, s{S_T1}
v_bfe_u32 v6, v1, 3, 1
v_lshrrev_b32 v7, 4, v1
v_lshlrev_b32 v6, 8, v6
v_lshlrev_b32 v7, 4, v7
v_add3_u32 v9, v6, v7, 0
v_add_u32 v9, {L_QL}, v9
v_mov_b32 v10, {L_SLOT}""".replace("v_add3_u32 v9, v6, v7, 0", "v_add_u32 v9, v6, v7"))
        lp = a.newlabel("Lq"); okq = a.newlabel("Lqok"); rt = a.newlabel("Lqr")
        a(f"""{lp}:
s_load_dwordx16 s[{S_Q}:{S_Q+15}], s[{S_X}:{S_X+1}], 0 glc
s_load_dwordx16 s[{S_Q+16}:{S_Q+31}], s[{S_X}:{S_X+1}], 64 glc
s_add_u32 s{S_CNT}, s{S_CNT}, 1
s_waitcnt lgkmcnt(0)
s_xor_b32 s{S_T0}, s{S_Q}, s{S_TAG}
s_xor_b32 s{S_T1}, s{S_Q+31}, s{S_TAG}
s_or_b32 s{S_T0}, s{S_T0}, s{S_T1}
s_and_b32 s{S_T0}, s{S_T0}, 0xff
s_cmp_lg_u32 s{S_T0}, 0
s_cbranch_scc1 {rt}""")
        for i in range(32): a(f"v_writelane_b32 v6, s{S_Q+i}, {i}")
        a(f"""s_mov_b32 exec_hi, 0
v_xor_b32 v7, v6, v{V_TAG}
v_and_b32 v7, 0xff, v7
v_cmp_ne_u32 vcc, 0, v7
s_mov_b32 exec_hi, -1
s_cbranch_vccz {okq}
{rt}:
s_sleep 2
s_cmp_lt_u32 s{S_CNT}, {SPIN}
s_cbranch_scc1 {lp}
{okq}:
s_mov_b32 exec_hi, 0
ds_write_b16_d16_hi v8, v6
s_mov_b32 exec_hi, -1
s_waitcnt lgkmcnt(0)
s_barrier""")
        self.stamp(2)
        for s in range(4): a(f"ds_read_b128 v[{Q+4*s}:{Q+4*s+3}], v9 offset:{64*s}")
        a(f"ds_read_b32 v10, v10\ns_waitcnt lgkmcnt(0)\nv_readfirstlane_b32 s{S_F}, v10")
        for gi in range(NG):
            a(f"s_waitcnt vmcnt({4 + 4*(NG-1-gi)})")
            for s in range(4):
                c = "0" if s == 0 else f"v[{SC+4*gi}:{SC+4*gi+3}]"
                a(f"v_mfma_f32_16x16x32_bf16 v[{SC+4*gi}:{SC+4*gi+3}], v[{K+16*gi+4*s}:{K+16*gi+4*s+3}], v[{Q+4*s}:{Q+4*s+3}], {c}")
        vload(1)
        self.stamp(3)
        a(f"s_mov_b32 s{S_T0}, 0x3db504f3\ns_mov_b32 s{S_T2}, {f2u(LOG2E):#x}")
        n = 4 * NG
        for p in range(0, n, 2):
            x, y = SC + p, SC + p + 1
            t = 6 + (p // 2) % 2
            a(f"""v_cvt_pk_bf16_f32 v{t}, v{x}, v{y}
v_lshlrev_b32 v{x}, 16, v{t}
v_and_b32 v{y}, 0xffff0000, v{t}
v_mul_f32 v{x}, s{S_T0}, v{x}
v_mul_f32 v{y}, s{S_T0}, v{y}
v_cvt_pk_bf16_f32 v{t}, v{x}, v{y}
v_lshlrev_b32 v{x}, 16, v{t}
v_and_b32 v{y}, 0xffff0000, v{t}""")
        VM, VL = 214, 215
        a(f"v_max3_f32 v{VM}, v{SC}, v{SC+1}, v{SC+2}")
        i = 3
        while i < n:
            if i + 1 < n: a(f"v_max3_f32 v{VM}, v{VM}, v{SC+i}, v{SC+i+1}"); i += 2
            else: a(f"v_max_f32 v{VM}, v{VM}, v{SC+i}"); i += 1
        a(f"""v_mov_b32 v7, v{VM}
v_permlane32_swap_b32 v7, v{VM}
v_max_f32 v{VM}, v{VM}, v7
v_mov_b32 v7, v{VM}
v_permlane16_swap_b32 v7, v{VM}
v_max_f32 v{VM}, v{VM}, v7
v_bfe_u32 v8, v1, 3, 1
v_lshlrev_b32 v8, 5, v8
s_lshl_b32 s{S_T1}, s{S_W}, 2
s_add_u32 s{S_T1}, s{S_T1}, {L_ML}
v_add_u32 v9, s{S_T1}, v8
s_mov_b32 exec_lo, 0x101
s_mov_b32 exec_hi, 0
ds_write_b32 v9, v{VM}
s_mov_b64 exec, -1
s_waitcnt lgkmcnt(0)
s_barrier
v_add_u32 v10, {L_ML}, v8
ds_read_b128 v[{Q}:{Q+3}], v10
ds_read_b128 v[{Q+4}:{Q+7}], v10 offset:16
s_waitcnt lgkmcnt(0)
v_max3_f32 v{VM}, v{Q}, v{Q+1}, v{Q+2}
v_max3_f32 v{VM}, v{VM}, v{Q+3}, v{Q+4}
v_max3_f32 v{VM}, v{VM}, v{Q+5}, v{Q+6}
v_max_f32 v{VM}, v{VM}, v{Q+7}
v_mul_f32 v7, s{S_T2}, v{VM}""")
        self.stamp(4)
        for i in range(n): a(f"v_fma_f32 v{SC+i}, v{SC+i}, s{S_T2}, -v7")
        for i in range(n): a(f"v_exp_f32 v{SC+i}, v{SC+i}")
        a(f"v_add_f32 v{VL}, v{SC}, v{SC+1}\nv_add_f32 v6, v{SC+2}, v{SC+3}")
        for i in range(4, n, 2): a(f"v_add_f32 v{VL}, v{VL}, v{SC+i}\nv_add_f32 v6, v6, v{SC+i+1}")
        a(f"""v_add_f32 v{VL}, v{VL}, v6
v_mov_b32 v7, v{VL}
v_permlane32_swap_b32 v7, v{VL}
v_add_f32 v{VL}, v{VL}, v7
v_mov_b32 v7, v{VL}
v_permlane16_swap_b32 v7, v{VL}
v_add_f32 v{VL}, v{VL}, v7
s_mov_b32 exec_lo, 0x101
s_mov_b32 exec_hi, 0
ds_write_b32 v9, v{VL} offset:64
s_mov_b64 exec, -1""")
        for i in range(n): a(f"v_cvt_pk_bf16_f32 v{SC+i}, v{SC+i}, v{SC+i}")
        a("s_waitcnt lgkmcnt(0)\ns_barrier")
        for gi in range(2, NG): vload(gi)
        sk = a.newlabel("Lml")
        a(f"s_cmp_lg_u32 s{S_W}, 0\ns_cbranch_scc1 {sk}")
        T = Q
        a(f"""v_and_b32 v6, 15, v1
v_lshlrev_b32 v6, 2, v6
ds_read_b32 v{T+1}, v6 offset:{L_ML+64}
s_mul_i32 s{S_T0}, s{S_G}, 256
s_lshl_b32 s{S_T1}, s{S_C}, 4
s_add_u32 s{S_T0}, s{S_T0}, s{S_T1}
s_add_u32 s{S_T0}, s{S_T0}, {WS_ML:#x}
v_mov_b32 v9, s{S_T0}
v_mov_b32 v{T}, v{VM}
s_waitcnt lgkmcnt(0)""")
        for m in ("row_half_mirror", "quad_perm:[1,0,3,2]", "quad_perm:[2,3,0,1]"):
            a(f"v_add_f32_dpp v{T+1}, v{T+1}, v{T+1} {m} row_mask:0xf bank_mask:0xf")
        a(f"""v_mov_b32_dpp v{T+2}, v{T} row_ror:8 row_mask:0xf bank_mask:0xf
v_mov_b32_dpp v{T+3}, v{T+1} row_ror:8 row_mask:0xf bank_mask:0xf""")
        self.tagw([T, T + 1, T + 2, T + 3])
        a("s_mov_b64 exec, 1")
        self.wsst(T, 9)
        a(f"s_mov_b64 exec, -1\n{sk}:")
        self.stamp(5)
        self.F_gu_addr()
        self.F_gu_loads(GU, 0, self.GP)
        waits = []
        for gi in range(NG):
            for r in range(4): waits.append(self.GP + 4 * (NG - 1 - gi) if r == 0 else None)
        self.g64_steps(OA, V, [SC + i for i in range(n)], n, Q + 8, first=True, waits=waits)
        a(f"v_lshlrev_b32 v9, 4, v0\nds_write_b128 v9, v[{OA}:{OA+3}] offset:{L_ORED}")
        self.stamp(7)

    def F_gu_addr(self):
        a = self.a
        a(f"""v_and_b32 v6, 7, v1
v_and_b32 v7, 3, v1
v_min_u32 v7, 2, v7
v_lshlrev_b32 v7, 4, v7
v_lshrrev_b32 v8, 3, v1
s_lshl_b32 s{S_T0}, s{S_W}, 3
v_add_u32 v8, s{S_T0}, v8
v_mul_u32_u24 v8, 9216, v8
s_mul_i32 s{S_T0}, s{S_F}, 48
v_add3_u32 v7, v7, v8, s{S_T0}
v_mov_b32 v8, s{P_WG}
v_mov_b32 v9, s{P_WG+1}
v_mov_b32 v10, s{P_WU}
v_mov_b32 v12, s{P_WU+1}
v_cmp_lt_u32 vcc, 3, v6
v_cndmask_b32 v8, v8, v10, vcc
v_cndmask_b32 v9, v9, v12, vcc
v_add_co_u32 v212, vcc, v8, v7
v_addc_co_u32 v213, vcc, 0, v9, vcc
s_mov_b32 s{S_K1}, {64*9216}
s_mov_b32 s{S_K2}, 0""")
    def F_gu_loads(self, GU, i0, i1):
        a = self.a
        for i in range(i0, i1):
            self.gate()
            a(f"global_load_dwordx4 v[{GU+4*i}:{GU+4*i+3}], v[212:213], off{self.kw.get('gupol', self.nt)}")
            if i < 8: a(f"v_lshl_add_u64 v[212:213], v[212:213], 0, s[{S_K1}:{S_K2}]")

    def F_tail(self, K, GU, DN, OA, VX):
        a = self.a; nt = self.nt
        a("s_waitcnt lgkmcnt(0)\ns_barrier")
        sk = a.newlabel("Lpub")
        a(f"s_cmp_lg_u32 s{S_W}, 3\ns_cbranch_scc1 {sk}")
        T = K
        for w in range(8): a(f"ds_read_b128 v[{T+4*w}:{T+4*w+3}], v{V_L16} offset:{L_ORED + 1024*w}")
        a(f"""s_mul_i32 s{S_T0}, s{S_G}, 12
s_add_u32 s{S_T0}, s{S_T0}, s{S_C}
s_lshl_b32 s{S_T1}, s{S_T0}, 10
s_add_u32 s{S_T1}, s{S_T1}, {WS_HOP2:#x}
v_add_u32 v9, s{S_T1}, v{V_L16}
s_waitcnt lgkmcnt(0)""")
        self.tree_add(T, 8)
        self.tagw([T, T + 1, T + 2, T + 3])
        self.wsst(T, 9)
        a(f"{sk}:\ns_barrier")
        self.stamp(8)
        self.D = self.DT; self.nb = self.GP
        self.F_gu_loads(GU, self.GP, 9)
        self.srd(SRD_C, P_WD, 4608 * 1152)
        a(f"""s_mov_b32 s{S_K1}, 9216
s_mov_b32 s{S_K2}, 18432
v_lshrrev_b32 v6, 3, v1
s_mul_i32 s{S_T0}, s{S_F}, 24
v_add_u32 v6, s{S_T0}, v6
v_mul_u32_u24 v6, 1152, v6
v_and_b32 v7, 7, v1
v_lshlrev_b32 v7, 4, v7
s_lshl_b32 s{S_T0}, s{S_W}, 7
v_add3_u32 v6, v6, v7, s{S_T0}""")
        soff = ["0", f"s{S_K1}", f"s{S_K2}"]
        for s in range(3):
            self.gate()
            a(f"buffer_load_dwordx4 v[{DN+4*s}:{DN+4*s+3}], v6, s[{SRD_C}:{SRD_C+3}], {soff[s]} offen{nt}")
        sk = a.newlabel("Ld8")
        a(f"s_cmp_lg_u32 s{S_W}, 3\ns_cbranch_scc1 {sk}")
        for s in range(3):
            self.gate()
            a(f"buffer_load_dwordx4 v[{DN+12+4*s}:{DN+15+4*s}], v6, s[{SRD_C}:{SRD_C+3}], {soff[s]} offen offset:640{nt}")
        a(f"{sk}:")
        VP = 216
        a(f"""s_mul_i32 s{S_T0}, s{S_F}, 2304
s_add_u32 s{S_T0}, s{S_T0}, {WS_HOP4 - L_RED*0:#x}
v_add_u32 v{VP}, s{S_T0}, v{V_REDW}""")
        G = K; X1 = 112; T = 96; MD = 80
        VA = 217
        self.redsum_addr(VA, 1)
        sk = a.newlabel("Lmd")
        for r in range(4): a(f"v_mov_b32 v{X1+r}, 0")
        a(f"s_cmp_ge_u32 s{S_W}, 3\ns_cbranch_scc1 {sk}")
        for r in range(4): a(f"v_lshlrev_b32 v{VX+r}, 16, v{VX+r}")
        self.mod_preload(MD, T, [0, 18, 9])
        self.modulate1(MD + 4, T + 4)
        a(f"{sk}:")
        self.a_gather(G, T)
        a("s_waitcnt lgkmcnt(0)\ns_barrier")
        self.stamp(9)
        sk = a.newlabel("Lx1")
        a(f"s_cmp_ge_u32 s{S_W}, 3\ns_cbranch_scc1 {sk}")
        self.exec_t144()
        self.x1_finish(VX, G, X1, T, MD)
        a("s_mov_b64 exec, -1")
        self.ln_stage1(X1, T)
        a(f"{sk}:\ns_waitcnt lgkmcnt(0)\ns_barrier")
        sk = a.newlabel("Lh2")
        a(f"s_cmp_ge_u32 s{S_W}, 3\ns_cbranch_scc1 {sk}")
        self.ln_stage2(X1, T + 8, T)
        self.modulate2(T + 8, MD + 4, MD + 8, T)
        self.exec_t144()
        self.xq_write(T + 8, L_XQ)
        a(f"s_mov_b64 exec, -1\n{sk}:\ns_waitcnt lgkmcnt(0)\ns_barrier")
        XR = 16; ACC = 32; BT = 36
        self.xq_read(XR, L_XQ)
        a("s_waitcnt vmcnt(0) lgkmcnt(0)")
        self.g64_steps(ACC, GU, [XR + i for i in range(9)], 9, BT)
        self.half_add([ACC], BT)
        self.set_exec(0x00ff00ff)
        self.red_write(ACC, 0)
        a("s_mov_b64 exec, -1\ns_waitcnt lgkmcnt(0)\ns_barrier")
        self.stamp(10)
        sk = a.newlabel("Lact")
        a(f"s_cmp_lg_u32 s{S_W}, 0\ns_cbranch_scc1 {sk}")
        R0 = 40
        self.red_sum(R0, 1, VA)
        self.rne_n([R0, R0 + 1, R0 + 2], R0 + 12)
        for r in range(3): a(f"v_mov_b32_dpp v{R0+4+r}, v{R0+r} row_ror:8 row_mask:0xf bank_mask:0xf")
        c1 = f2u(0.044715); c2 = f2u(-2.0 * 0.7978845608028654 * LOG2E)
        ts = [R0 + 8 + r for r in range(3)]
        for r in range(3): a(f"v_mul_f32 v{ts[r]}, v{R0+r}, v{R0+r}")
        for r in range(3): a(f"v_mul_f32 v{ts[r]}, {c1:#x}, v{ts[r]}")
        for r in range(3): a(f"v_fma_f32 v{ts[r]}, v{ts[r]}, v{R0+r}, v{R0+r}")
        for r in range(3): a(f"v_mul_f32 v{ts[r]}, {c2:#x}, v{ts[r]}")
        for r in range(3): a(f"v_exp_f32 v{ts[r]}, v{ts[r]}")
        for r in range(3): a(f"v_add_f32 v{ts[r]}, 1.0, v{ts[r]}")
        for r in range(3): a(f"v_rcp_f32 v{ts[r]}, v{ts[r]}")
        for r in range(3): a(f"v_mul_f32 v{ts[r]}, v{R0+r}, v{ts[r]}")
        self.rne_n(ts, R0 + 12)
        for r in range(3): a(f"v_mul_f32 v{ts[r]}, v{ts[r]}, v{R0+4+r}")
        for r in range(3): a(f"v_cvt_pk_bf16_f32 v{ts[r]}, v{ts[r]}, v{ts[r]}")
        a(f"v_mul_u32_u24 v6, {XQS*4}, v1")
        self.set_exec(0xff)
        for r in range(3): a(f"ds_write_b32 v6, v{ts[r]} offset:{L_XQ2 + 48*r}")
        a(f"s_mov_b64 exec, -1\n{sk}:\ns_waitcnt lgkmcnt(0)\ns_barrier")
        a(f"v_lshrrev_b32 v6, 3, v1\nv_mul_u32_u24 v6, {XQS*4}, v6")
        for s in range(3): a(f"ds_read_b32 v{XR+s}, v6 offset:{L_XQ2+48*s}")
        a("s_waitcnt lgkmcnt(0)")
        self.g64_steps(ACC, DN, [XR, XR + 1, XR + 2], 3, BT)
        self.half_add([ACC], BT)
        self.tagw([ACC, ACC + 1, ACC + 2, ACC + 3])
        self.set_exec(0x00ff00ff)
        self.wsst(ACC, VP)
        a(f"s_mov_b64 exec, -1\ns_cmp_lg_u32 s{S_W}, 3\ns_cbranch_scc1 L_Fend")
        A2 = 44
        self.g64_steps(A2, DN + 12, [XR, XR + 1, XR + 2], 3, BT)
        self.half_add([A2], BT)
        self.tagw([A2, A2 + 1, A2 + 2, A2 + 3])
        self.set_exec(0x00ff00ff)
        self.wsst(A2, VP, 1280)
        a("s_mov_b64 exec, -1\nL_Fend:")
        self.stamp(11)
        self.stamp_flush()
        a("s_endpgm")

    def tile_addr(self, vdst, row_stride, s_off):
        a = self.a
        a(f"""v_lshrrev_b32 v6, 3, v1
s_lshl_b32 s{S_T3}, s{S_W}, 3
v_add_u32 v6, s{S_T3}, v6
v_mul_u32_u24 v6, {row_stride}, v6
v_and_b32 v7, 7, v1
v_lshlrev_b32 v7, 4, v7
v_add3_u32 v{vdst}, v6, v7, s{s_off}""")
    def silu_pair(self, regs, T=6):
        a = self.a
        for k in range(0, len(regs), 3):
            rs = regs[k:k + 3]
            for i, r in enumerate(rs): a(f"v_lshlrev_b32 v{r}, 16, v{r}")
            for i, r in enumerate(rs): a(f"v_mul_f32 v{T+i}, {f2u(-LOG2E):#x}, v{r}")
            for i, r in enumerate(rs): a(f"v_exp_f32 v{T+i}, v{T+i}")
            for i, r in enumerate(rs): a(f"v_add_f32 v{T+i}, 1.0, v{T+i}")
            for i, r in enumerate(rs): a(f"v_rcp_f32 v{T+i}, v{T+i}")
            for i, r in enumerate(rs): a(f"v_mul_f32 v{r}, v{r}, v{T+i}")
            for i, r in enumerate(rs): a(f"v_cvt_pk_bf16_f32 v{r}, v{r}, v{r}")

    def S(self):
        a = self.a; nt = self.nt
        SID = S_G
        MA, WQ, T3, T4 = 16, 28, 64, 112
        VX, LN = 152, 156
        XR, ACC, BT = 160, 172, 184
        G = 196
        CS = 228
        VMA, VWQ, VWO, VMR, VCO = 243, 244, 245, 246, 248
        VA = 247
        a(f"""L_S:
s_sub_u32 s{SID}, s2, 192
v_lshrrev_b32 v8, 3, v1
s_lshl_b32 s{S_T3}, s{S_W}, 3
v_add_u32 v8, s{S_T3}, v8
v_lshlrev_b32 v{VCO}, 1, v8
s_lshl_b32 s{S_T0}, s{SID}, 7""")
        self.tile_addr(VWQ, 8192, S_T0)
        a(f"s_waitcnt lgkmcnt(0)")
        self.srd(SRD_B, P_WQ, 576 * 8192)
        for i in range(7):
            a(f"v_add_u32 v6, {64*i*8192}, v{VWQ}\nbuffer_load_dwordx4 v[{WQ+4*i}:{WQ+4*i+3}], v6, s[{SRD_B}:{SRD_B+3}], 0 offen{nt}")
        self.stamp(1)
        a(f"s_load_dword s{S_E}, s[{P_WS}:{P_WS+1}], {WS_EPOCH}")
        self.srd(SRD_A, P_WM, 576 * 6912); self.srd(SRD_WS, P_WS, WS_SIZE)
        self.thread_setup()
        for r in range(4): a(f"v_mov_b32 v{VX+r}, 0")
        sk = a.newlabel("Lsx")
        a(f"s_cmp_ge_u32 s{S_W}, 3\ns_cbranch_scc1 {sk}")
        self.srd(SRD_C, P_X, 1152)
        self.exec_t144()
        self.load_vec4_u16(VX, SRD_C, V_COL)
        a(f"s_mov_b64 exec, -1\n{sk}:")
        self.common_setup()
        self.redsum_addr(VA, 3)
        for i in range(7, 9):
            a(f"s_waitcnt vmcnt(6)\nv_add_u32 v6, {64*i*8192}, v{VWQ}\nbuffer_load_dwordx4 v[{WQ+4*i}:{WQ+4*i+3}], v6, s[{SRD_B}:{SRD_B+3}], 0 offen{nt}")
        self.get_tag()
        sk = a.newlabel("Lsi")
        a(f"s_cmp_ge_u32 s{S_W}, 3\ns_cbranch_scc1 {sk}\ns_waitcnt vmcnt(2)")
        for r in range(4): a(f"v_lshlrev_b32 v{VX+r}, 16, v{VX+r}")
        self.ln_stage1(VX, BT)
        a(f"{sk}:\ns_waitcnt lgkmcnt(0)\ns_barrier")
        sk = a.newlabel("Lh0")
        a(f"s_cmp_ge_u32 s{S_W}, 3\ns_cbranch_scc1 {sk}")
        self.ln_stage2(VX, LN, BT)
        self.exec_t144()
        a(f"v_add_u32 v8, {WS_HOP0:#x}, v{V_G16}\nv_add_u32 v9, {WS_HOP0+4608:#x}, v{V_G16}\nv_add_u32 v10, {WS_HOP0+9216:#x}, v{V_G16}\ns_mov_b64 s[62:63], exec")
        self.gather_retry([(G + 4 * (2 * rs + part), 8 + rs, part * 2304) for rs in range(3) for part in range(2)], 64, 6, ["exec"] * 6)
        a("s_mov_b64 exec, s[62:63]")
        self.stamp(9)
        for k in (2, 4):
            for h in range(0, 8, 2): a(f"v_pk_add_f32 v[{G+h}:{G+h+1}], v[{G+h}:{G+h+1}], v[{G+4*k+h}:{G+4*k+h+1}]")
        self.rne_n([G + i for i in range(8)], 6)
        self.modulate1(G + 4, 6)
        self.modulate2(LN, G + 4, G, 6)
        self.xq_write(LN, L_XQ2)
        a(f"s_mov_b64 exec, -1\n{sk}:\ns_waitcnt lgkmcnt(0)\ns_barrier")
        self.stamp(3)
        self.xq_read(XR, L_XQ2)
        a(f"""s_lshl_b32 s{S_T0}, s{SID}, 8
s_add_u32 s{S_T0}, s{S_T0}, {WS_Q:#x}
v_add_u32 v9, s{S_T0}, v{V_L16}
s_waitcnt vmcnt(0) lgkmcnt(0)""")
        self.g64_steps(ACC, WQ, [XR + i for i in range(9)], 9, BT)
        self.half_add([ACC], BT)
        self.set_exec(0x00ff00ff)
        self.red_write(ACC, 0)
        a("s_mov_b64 exec, -1\ns_waitcnt lgkmcnt(0)\ns_barrier")
        sk = a.newlabel("Lqp")
        a(f"s_cmp_lg_u32 s{S_W}, 7\ns_cbranch_scc1 {sk}")
        self.red_sum(G, 1, VA)
        self.rne_n([G, G + 1, G + 2, G + 3], 6)
        self.tagw([G, G + 1, G + 2, G + 3])
        self.set_exec(0xffff)
        self.wsst(G, 9)
        a(f"s_mov_b64 exec, -1\n{sk}:\ns_barrier")
        self.stamp(4)
        self.srd(SRD_C, P_C, 1152)
        for i in range(9): a(f"buffer_load_ushort v{CS+i}, v{VCO}, s[{SRD_C}:{SRD_C+3}], 0 offen offset:{128*i}")
        notwo = "L_Snotwo"
        a(f"s_cmp_ge_u32 s{SID}, 48\ns_cbranch_scc1 {notwo}")
        a(f"""s_mul_i32 s{S_C}, s{SID}, 21846
s_lshr_b32 s{S_C}, s{S_C}, 16
s_mul_i32 s{S_T0}, s{S_C}, 3
s_sub_u32 s{S_M}, s{SID}, s{S_T0}
s_lshl_b32 s{S_T0}, s{S_C}, 8
s_and_b32 s{S_T1}, s{S_W}, 1
s_lshl_b32 s{S_T1}, s{S_T1}, 7
s_add_u32 s{S_T0}, s{S_T0}, s{S_T1}
s_lshr_b32 s{S_T1}, s{S_W}, 1
s_lshl_b32 s{S_T1}, s{S_T1}, 5
s_add_u32 s{S_T0}, s{S_T0}, s{S_T1}
s_mul_i32 s{S_T0}, s{S_T0}, 1152
s_mul_i32 s{S_T1}, s{S_M}, 384
s_add_u32 s{S_T0}, s{S_T0}, s{S_T1}
v_lshrrev_b32 v6, 3, v1
v_mul_u32_u24 v6, 1152, v6
v_and_b32 v7, 7, v1
v_lshlrev_b32 v7, 4, v7
v_add3_u32 v{VWO}, v6, v7, s{S_T0}
s_mov_b32 s{S_K1}, 9216
s_mov_b32 s{S_K2}, 18432
s_mov_b32 s{S_K3}, 27648""")
        self.srd(SRD_B, P_WO, 4096 * 1152)
        so = ["0", f"s{S_K1}", f"s{S_K2}", f"s{S_K3}"]
        for b in range(3):
            for r in range(4):
                a(f"buffer_load_dwordx4 v[{T3+16*b+4*r}:{T3+16*b+4*r+3}], v{VWO}, s[{SRD_B}:{SRD_B+3}], {so[r]} offen offset:{128*b}{nt}")
        sk = a.newlabel("Lmr1")
        a(f"s_cmp_ge_u32 s{SID}, 4\ns_cbranch_scc1 {sk}")
        a(f"s_add_u32 s{S_F}, s{SID}, 32")
        self.modrest_tiles([(T4, S_F)], CS, ACC, BT, G, VMR, VA)
        a(f"{sk}:")
        self.S_wo(T3, ACC, BT, G, VA)
        a("s_branch L_Sred")
        a(f"{notwo}:")
        a(f"s_sub_u32 s{S_F}, s{SID}, 48\ns_add_u32 s{S_M}, s{S_F}, 16")
        self.modrest_tiles([(T3, S_F), (T4, S_M)], CS, ACC, BT, G, VMR, VA)
        a("s_branch L_Send")
        a("L_Sred:")
        a(f"s_cmp_ge_u32 s{SID}, 36\ns_cbranch_scc1 L_Send")
        self.S_reduce(VX)
        a("L_Send:")
        self.stamp(11)
        self.stamp_flush()
        a("s_endpgm")

    def modrest_tiles(self, tiles, CS, ACC, BT, G, VMR, VA):
        a = self.a; nt = self.nt
        for k, (reg, st) in enumerate(tiles):
            a(f"s_lshl_b32 s{S_T0}, s{st}, 7\ns_add_u32 s{S_T0}, s{S_T0}, 2304")
            self.tile_addr(VMR, 6912, S_T0)
            for i in range(9):
                a(f"v_add_u32 v6, {64*i*6912}, v{VMR}\nbuffer_load_dwordx4 v[{reg+4*i}:{reg+4*i+3}], v6, s[{SRD_A}:{SRD_A+3}], 0 offen{nt}")
        a(f"s_waitcnt vmcnt({9*len(tiles)})")
        self.silu_pair([CS + i for i in range(9)])
        a("s_barrier")
        for k, (reg, st) in enumerate(tiles):
            a(f"s_waitcnt vmcnt({9*(len(tiles)-1-k)})")
            self.g64_steps(ACC, reg, [CS + i for i in range(9)], 9, BT)
            self.half_add([ACC], BT)
            self.set_exec(0x00ff00ff)
            self.red_write(ACC, k)
            a("s_mov_b64 exec, -1")
        a("s_waitcnt lgkmcnt(0)\ns_barrier")
        sk = a.newlabel("Lmrp")
        a(f"s_cmp_lg_u32 s{S_W}, 7\ns_cbranch_scc1 {sk}")
        self.red_sum(G, len(tiles), VA)
        self.rne_n([G, G + 1, G + 2, G + 3], 6)
        self.tagw([G, G + 1, G + 2, G + 3])
        a(f"v_mov_b32 v6, s{tiles[0][1]}")
        if len(tiles) > 1:
            a(f"v_mov_b32 v7, s{tiles[1][1]}\nv_cmp_lt_u32 vcc, 15, v1\nv_cndmask_b32 v6, v6, v7, vcc")
        a(f"v_lshlrev_b32 v6, 8, v6\nv_and_b32 v7, 15, v1\nv_lshl_add_u32 v6, v7, 4, v6\nv_add_u32 v6, {WS_MODR:#x}, v6")
        self.set_exec((1 << (16 * len(tiles))) - 1)
        self.wsst(G, 6)
        a(f"s_mov_b64 exec, -1\n{sk}:")

    def S_wo(self, T3, ACC, BT, G, VA):
        a = self.a
        a(f"""s_mul_i32 s{S_T0}, s{S_C}, {12*1024}
s_lshl_b32 s{S_T1}, s{S_W}, 11
s_add_u32 s{S_T0}, s{S_T0}, s{S_T1}
s_add_u32 s{S_T0}, s{S_T0}, {WS_HOP2:#x}
v_add_u32 v8, s{S_T0}, v{V_L16}
s_mul_i32 s{S_T0}, s{S_C}, 2304
s_mul_i32 s{S_T1}, s{S_M}, 768
s_add_u32 s{S_T0}, s{S_T0}, s{S_T1}
s_add_u32 s{S_T0}, s{S_T0}, {WS_HOP3:#x}
v_add_u32 v10, s{S_T0}, v{V_L16}
v_lshlrev_b32 v9, 4, v0
v_lshrrev_b32 v12, 3, v1
v_lshlrev_b32 v12, 4, v12
s_lshl_b32 s{S_T0}, s{S_W}, 7
v_add_u32 v12, s{S_T0}, v12
s_waitcnt vmcnt(0)
s_barrier""")
        sk = a.newlabel("Lg2s")
        a(f"s_cmp_ge_u32 s{S_W}, 6\ns_cbranch_scc1 {sk}")
        a(f"""s_lshl_b32 s{S_T0}, s{S_C}, 8
s_add_u32 s{S_T0}, s{S_T0}, {WS_ML:#x}
v_min_u32 v7, 11, v1
v_lshlrev_b32 v7, 4, v7
v_add_u32 v7, s{S_T0}, v7""")
        a(f"v_mov_b32 v{G+20}, v7")
        self.gather_retry([(G + 8, G + 20, 0)], 64, 6, [0xffff])
        M0, L0, M1, L1 = G + 8, G + 9, G + 10, G + 11
        T = G + 12
        a(f"v_mov_b32 v{T}, v{M0}\nv_mov_b32 v{T+1}, v{M1}")
        for sh in (8, 4, 2, 1):
            for t in (T, T + 1): a(f"v_max_f32_dpp v{t}, v{t}, v{t} row_ror:{sh} row_mask:0xf bank_mask:0xf")
        a(f"""s_mov_b32 s{S_T2}, {f2u(LOG2E):#x}
v_sub_f32 v{T}, v{M0}, v{T}
v_sub_f32 v{T+1}, v{M1}, v{T+1}
v_mul_f32 v{T}, s{S_T2}, v{T}
v_mul_f32 v{T+1}, s{S_T2}, v{T+1}
v_exp_f32 v{T}, v{T}
v_exp_f32 v{T+1}, v{T+1}
v_cmp_gt_u32 vcc, 12, v1
s_nop 1
v_cndmask_b32 v{T}, 0, v{T}, vcc
v_cndmask_b32 v{T+1}, 0, v{T+1}, vcc
v_mul_f32 v{T+2}, v{T}, v{L0}
v_mul_f32 v{T+3}, v{T+1}, v{L1}""")
        for sh in (8, 4, 2, 1):
            for t in (T + 2, T + 3): a(f"v_add_f32_dpp v{t}, v{t}, v{t} row_ror:{sh} row_mask:0xf bank_mask:0xf")
        a(f"""v_rcp_f32 v{T+2}, v{T+2}
v_rcp_f32 v{T+3}, v{T+3}
s_nop 0
v_mul_f32 v{T}, v{T}, v{T+2}
v_mul_f32 v{T+1}, v{T+1}, v{T+3}
s_lshl_b32 s{S_T0}, s{S_W}, 1
s_add_u32 s{S_T1}, s{S_T0}, 1
s_nop 0
v_readlane_b32 s{S_T2}, v{T}, s{S_T0}
v_readlane_b32 s{S_T3}, v{T+1}, s{S_T0}
v_readlane_b32 s60, v{T}, s{S_T1}
v_readlane_b32 s61, v{T+1}, s{S_T1}
v_bfe_u32 v6, v1, 3, 1
v_cmp_eq_u32 vcc, 1, v6
v_mov_b32 v{T+4}, s{S_T2}
v_mov_b32 v{T+5}, s{S_T3}
v_mov_b32 v{T+6}, s60
v_mov_b32 v{T+7}, s61
v_cndmask_b32 v{T+4}, v{T+4}, v{T+5}, vcc
v_cndmask_b32 v{T+6}, v{T+6}, v{T+7}, vcc""")
        self.stamp(12)
        self.gather_retry([(G, 8, 0), (G + 4, 8, 1024)], 64, 6, [-1, -1])
        for r in range(4): a(f"v_mul_f32 v{G+r}, v{G+r}, v{T+4}")
        for r in range(4): a(f"v_fmac_f32 v{G+r}, v{G+4+r}, v{T+6}")
        a(f"ds_write_b128 v9, v[{G}:{G+3}] offset:{L_ORED}\n{sk}:\ns_waitcnt lgkmcnt(0)\ns_barrier")
        self.stamp(5)
        for w in range(6): a(f"ds_read_b128 v[{G+4*w}:{G+4*w+3}], v12 offset:{L_ORED + 1024*w}")
        a("s_waitcnt lgkmcnt(0)")
        self.tree_add(G, 6)
        for r in range(4): a(f"v_cvt_pk_bf16_f32 v{G+r}, v{G+r}, v{G+r}")
        self.mkB(BT, G)
        for r in range(4):
            b = BT + 4 * (r & 1)
            if r + 1 < 4: self.mkB(BT + 4 * ((r + 1) & 1), G + r + 1)
            for blk in range(3):
                c = "0" if r == 0 else f"v[{ACC+4*blk}:{ACC+4*blk+3}]"
                a(f"v_mfma_f32_16x16x32_bf16 v[{ACC+4*blk}:{ACC+4*blk+3}], v[{T3+16*blk+4*r}:{T3+16*blk+4*r+3}], v[{b}:{b+3}], {c}")
        self.half_add([ACC, ACC + 4, ACC + 8], BT)
        self.set_exec(0x00ff00ff)
        for blk in range(3): self.red_write(ACC + 4 * blk, blk)
        a("s_mov_b64 exec, -1\ns_waitcnt lgkmcnt(0)\ns_barrier")
        sk = a.newlabel("Lap")
        a(f"s_cmp_lg_u32 s{S_W}, 0\ns_cbranch_scc1 {sk}")
        self.red_sum(G, 3, VA)
        self.tagw([G, G + 1, G + 2, G + 3])
        self.set_exec((1 << 48) - 1)
        self.wsst(G, 10)
        a(f"s_mov_b64 exec, -1\n{sk}:")
        self.stamp(6)

    def S_reduce(self, VX):
        a = self.a
        SID = S_G
        G = 16; X1 = 112; T = 96; R = 128
        a(f"""s_mul_i32 s{S_T0}, s{S_W}, {32*2304}
s_lshl_b32 s{S_T1}, s{SID}, 6
s_add_u32 s{S_T0}, s{S_T0}, s{S_T1}
s_add_u32 s{S_T0}, s{S_T0}, {WS_HOP4:#x}
v_lshrrev_b32 v6, 2, v1
v_mul_u32_u24 v6, 2304, v6
v_and_b32 v7, 3, v1
v_lshlrev_b32 v7, 4, v7
v_add3_u32 v{R+16}, v6, v7, s{S_T0}
v_add_u32 v{R+17}, {16*2304}, v{R+16}""")
        MD = 80
        sk = a.newlabel("Lrm")
        a(f"s_cmp_ge_u32 s{S_W}, 3\ns_cbranch_scc1 {sk}")
        self.mod_preload(MD, T, [0, 27])
        a(f"{sk}:")
        self.a_gather(G, T)
        a("s_waitcnt lgkmcnt(0)\ns_barrier")
        sk = a.newlabel("Lrx")
        a(f"s_cmp_ge_u32 s{S_W}, 3\ns_cbranch_scc1 {sk}")
        self.exec_t144()
        self.x1_finish(VX, G, X1, T, MD)
        a(f"v_lshlrev_b32 v6, 5, v0\nds_write_b128 v6, v[{X1}:{X1+3}] offset:{L_ORED}\nds_write_b128 v6, v[{MD+4}:{MD+7}] offset:{L_ORED+16}")
        a(f"s_mov_b64 exec, -1\n{sk}:\ns_waitcnt lgkmcnt(0)\ns_barrier")
        FX, FG, FO = R + 20, R + 21, R + 22
        a(f"""v_lshrrev_b32 v6, 2, v1
v_and_b32 v6, 3, v6
s_lshl_b32 s{S_T0}, s{SID}, 2
v_add_u32 v8, s{S_T0}, v6
v_and_b32 v7, 3, v1
v_lshlrev_b32 v9, 5, v8
v_lshl_add_u32 v9, v7, 2, v9
ds_read_b32 v{FX}, v9 offset:{L_ORED}
ds_read_b32 v{FG}, v9 offset:{L_ORED+16}
v_lshrrev_b32 v6, 4, v8
v_lshlrev_b32 v6, 7, v6
v_bfe_u32 v9, v8, 3, 1
v_lshlrev_b32 v9, 6, v9
v_and_b32 v10, 7, v8
v_lshlrev_b32 v10, 1, v10
v_add3_u32 v6, v6, v9, v10
v_lshl_add_u32 v{FO}, v7, 4, v6
v_and_b32 v6, 15, v1
v_lshlrev_b32 v{R+23}, 2, v6
s_lshl_b32 s{S_T0}, s{S_W}, 6
v_add_u32 v{R+24}, s{S_T0}, v{V_L16}""")
        self.srd(SRD_C, P_OUT, 1152)
        self.stamp(7)
        sk = a.newlabel("Lh4")
        a(f"s_cmp_ge_u32 s{S_W}, 6\ns_cbranch_scc1 {sk}")
        self.gather_retry([(R, R + 16, 0), (R + 4, R + 17, 0)], 64, 6, [-1, -1])
        self.stamp(8)
        a(f"v_pk_add_f32 v[{R}:{R+1}], v[{R}:{R+1}], v[{R+4}:{R+5}]\nv_pk_add_f32 v[{R+2}:{R+3}], v[{R+2}:{R+3}], v[{R+6}:{R+7}]")
        for sh in (4, 8):
            for r in range(4): a(f"v_add_f32_dpp v{R+r}, v{R+r}, v{R+r} row_ror:{sh} row_mask:0xf bank_mask:0xf")
        for op in ("v_permlane32_swap_b32", "v_permlane16_swap_b32"):
            for r in range(4): a(f"v_mov_b32 v{R+4+r}, v{R+r}")
            for r in range(4): a(f"{op} v{R+4+r}, v{R+r}")
            for r in range(4): a(f"v_add_f32 v{R+r}, v{R+r}, v{R+4+r}")
        a("s_mov_b64 exec, 15")
        a(f"ds_write_b128 v{R+24}, v[{R}:{R+3}] offset:{L_RED}")
        a(f"s_mov_b64 exec, -1\n{sk}:\ns_waitcnt lgkmcnt(0)\ns_barrier\ns_cmp_lg_u32 s{S_W}, 0\ns_cbranch_scc1 L_Send")
        for w in range(6): a(f"ds_read_b32 v{R+w}, v{R+23} offset:{L_RED+64*w}")
        a(f"""s_waitcnt lgkmcnt(0)
v_add_f32 v{R}, v{R}, v{R+1}
v_add_f32 v{R+2}, v{R+2}, v{R+3}
v_add_f32 v{R+4}, v{R+4}, v{R+5}
v_add_f32 v{R}, v{R}, v{R+2}
v_add_f32 v{R}, v{R}, v{R+4}
v_cvt_pk_bf16_f32 v{R}, v{R}, v{R}
v_and_b32 v{R}, 0xffff0000, v{R}
v_mul_f32 v{R}, v{FG}, v{R}
v_cvt_pk_bf16_f32 v{R}, v{R}, v{R}
v_and_b32 v{R}, 0xffff0000, v{R}
v_add_f32 v{R}, v{FX}, v{R}
v_cvt_pk_bf16_f32 v{R}, v{R}, v{R}
s_mov_b32 exec_lo, 0xffff
s_mov_b32 exec_hi, 0
buffer_store_short v{R}, v{FO}, s[{SRD_C}:{SRD_C+3}], 0 offen
s_cmp_lg_u32 s{SID}, 0
s_cbranch_scc1 L_Send
s_add_u32 s{S_T0}, s{S_E}, 1
v_mov_b32 v6, s{S_T0}
v_mov_b32 v7, {WS_EPOCH}
s_mov_b64 exec, 1
buffer_store_dword v6, v7, s[{SRD_WS}:{SRD_WS+3}], 0 offen""")

    def build(self):
        a = self.a
        self.prologue()
        self.F()
        self.S()
        a("L_end:\ns_endpgm")
        body, nn = a.text()
        name = KN + "_kernel"
        s = HDR + f"; @launch grid=(256,1,1) block=(512,1,1) lds={LDS_BYTES}\n"
        s += '.amdgcn_target "amdgcn-amd-amdhsa--gfx950"\n.text\n' + f".globl {name}\n.p2align 8\n.type {name},@function\n{name}:\n" + body
        s += f""".section .rodata,"a"
.p2align 6
.amdhsa_kernel {name}
  .amdhsa_next_free_vgpr 256
  .amdhsa_next_free_sgpr 102
  .amdhsa_accum_offset 256
  .amdhsa_group_segment_fixed_size 0
  .amdhsa_kernarg_size 112
  .amdhsa_user_sgpr_count 2
  .amdhsa_user_sgpr_kernarg_segment_ptr 1
  .amdhsa_system_sgpr_workgroup_id_x 1
.end_amdhsa_kernel
"""
        return s, nn

if __name__ == "__main__":
    import argparse
    ap = argparse.ArgumentParser()
    ap.add_argument("-o", default="cdna_kernels/%s.s" % KN)
    ap.add_argument("--stamps", action="store_true")
    ap.add_argument("--fake-xcc", action="store_true")
    ap.add_argument("--no-nt", action="store_true")
    ap.add_argument("--dbgstamp", action="store_true")
    ap.add_argument("--throttle", type=int, default=0)
    ap.add_argument("--depth", type=int, default=5)
    ap.add_argument("--fexit", action="store_true")
    ap.add_argument("--gp", type=int, default=2)
    ap.add_argument("--gupol", default=None)
    ap.add_argument("--dt", type=int, default=3)
    args = ap.parse_args()
    g = Gen(stamps=args.stamps, fake_xcc=args.fake_xcc, nt=not args.no_nt, dbgstamp=args.dbgstamp, throttle=args.throttle, depth=args.depth, fexit=args.fexit, gp=args.gp, dt=args.dt, **({'gupol': (' ' + args.gupol).rstrip()} if args.gupol is not None else {}))
    txt, nn = g.build()
    open(args.o, "w").write(txt)
    print("wrote", args.o, "lines", txt.count("\n"), "hazard nops", nn)
```
